```python
import torch

def _softmax(x, axis=-1):
    return torch.softmax(x, dim=axis)
def _gelu(x):
    return torch.nn.functional.gelu(x, approximate="tanh")
def _silu(x):
    return torch.nn.functional.silu(x)
def _sigmoid(x):
    return torch.sigmoid(x)
def _layernorm(x, axis=-1, eps=1e-5):
    m = x.mean(dim=axis, keepdim=True)
    v = x.var(dim=axis, keepdim=True, unbiased=False)
    return (x - m) / torch.sqrt(v + eps)
def _scatter_add(tgt, idx, src, axis=0):
    return tgt.clone().index_add_(axis, idx, src)
def _segment_sum(src, seg, n):
    out = torch.zeros((n,) + src.shape[1:], dtype=src.dtype)
    return out.index_add_(0, seg, src)
def _pad(x, pw):
    flat = tuple(v for pair in reversed(pw) for v in pair)
    return torch.nn.functional.pad(x, flat)

kernel_name = 'concat_heads__gqa_block_cached__mha_block_cached__near_ridge'

def setup_inputs():

    _w = (lambda a: (lambda t: t.to(torch.bfloat16) if t.is_floating_point() else t)(torch.as_tensor(a)))
    def _A_setup():
        B, Sq, D = 16, 32, 576
        Hq, Hkv, Sk, Dh = 32, 16, 32, 128
        assert Hq % Hkv == 0, (Hq, Hkv)
        return {
            "x": _w((lambda *s: torch.randn(*s, dtype=torch.bfloat16) * 0.8)(B, Sq, D)),
            "k_cache": _w((lambda *s: torch.randn(*s, dtype=torch.bfloat16) * 0.8)(B, Hkv, Sk, Dh)),
            "v_cache": _w((lambda *s: torch.randn(*s, dtype=torch.bfloat16) * 0.05)(B, Hkv, Sk, Dh)),
            "wq": _w((lambda *s: torch.randn(*s, dtype=torch.bfloat16) * 0.8)(D, Hq * Dh) * (D ** -0.5)),
            "wo": _w((lambda *s: torch.randn(*s, dtype=torch.bfloat16) * 0.05)(Hq * Dh, D) * ((Hq * Dh) ** -0.5)),
        }
    _A_in = _A_setup()

    def _B_setup():
        B, Sq, D = 16, 32, 576
        H, Sk, Dh = 32, 32, 128
        return {
            "x": _w((lambda *s: torch.randn(*s, dtype=torch.bfloat16) * 0.8)(B, Sq, D)),
            "k_cache": _w((lambda *s: torch.randn(*s, dtype=torch.bfloat16) * 0.8)(B, H, Sk, Dh)),
            "v_cache": _w((lambda *s: torch.randn(*s, dtype=torch.bfloat16) * 0.05)(B, H, Sk, Dh)),
            "wq": _w((lambda *s: torch.randn(*s, dtype=torch.bfloat16) * 0.8)(D, H * Dh) * (D ** -0.5)),
            "wo": _w((lambda *s: torch.randn(*s, dtype=torch.bfloat16) * 0.05)(H * Dh, D) * ((H * Dh) ** -0.5)),
        }
    _B_in = _B_setup()

    return {
        "A_x": _A_in["x"],
        "A_k_cache": _A_in["k_cache"],
        "A_v_cache": _A_in["v_cache"],
        "A_wq": _A_in["wq"],
        "A_wo": _A_in["wo"],
        "B_x": _B_in["x"],
        "B_k_cache": _B_in["k_cache"],
        "B_v_cache": _B_in["v_cache"],
        "B_wq": _B_in["wq"],
        "B_wo": _B_in["wo"],
    }

def reference(A_x, A_k_cache, A_v_cache, A_wq, A_wo, B_x, B_k_cache, B_v_cache, B_wq, B_wo):
    def _A_ref(x, k_cache, v_cache, wq, wo):
        B, Sq, D = x.shape
        Hq, Dh = 32, 128
        Hkv = k_cache.shape[1]
        rep = Hq // Hkv
        q = (lambda x, *d: x.permute(*d))((x @ wq).reshape(B, Sq, Hq, Dh), 0, 2, 1, 3)
        k = (lambda x, n, axis: torch.repeat_interleave(x, n, dim=axis))(k_cache, rep, axis=1)
        v = (lambda x, n, axis: torch.repeat_interleave(x, n, dim=axis))(v_cache, rep, axis=1)
        scores = torch.einsum("bhqd,bhkd->bhqk", q, k) * (Dh ** -0.5)
        p = _softmax(scores, axis=-1)
        o = torch.einsum("bhqk,bhkd->bhqd", p, v)
        return (lambda x, *d: x.permute(*d))(o, 0, 2, 1, 3).reshape(B, Sq, Hq * Dh) @ wo

    def _B_ref(x, k_cache, v_cache, wq, wo):
        B, Sq, D = x.shape
        H, Dh = 32, 128
        q = (lambda x, *d: x.permute(*d))((x @ wq).reshape(B, Sq, H, Dh), 0, 2, 1, 3)
        scores = torch.einsum("bhqd,bhkd->bhqk", q, k_cache) * (Dh ** -0.5)
        p = _softmax(scores, axis=-1)
        o = torch.einsum("bhqk,bhkd->bhqd", p, v_cache)
        return (lambda x, *d: x.permute(*d))(o, 0, 2, 1, 3).reshape(B, Sq, H * Dh) @ wo

    a = _A_ref(A_x, A_k_cache, A_v_cache, A_wq, A_wo)
    b = _B_ref(B_x, B_k_cache, B_v_cache, B_wq, B_wo)
    return torch.concatenate([a, b], axis=-1)
```

```python
class Emit:
    def __init__(s):
        s.lines=[]; s.pos=0
        s.reset_haz()
        s.lds=[]
        s.vm=[]
        s.nops=0
    def reset_haz(s):
        s.vw={}
        s.tw={}
        s.mw={}
        s.mc={}
        s.sw={}
        s.st={}
        s.dw={}
        s.m0=-99
    def raw(s,t,n=1):
        s.lines.append(t); s.pos+=n
    def comment(s,t): s.lines.append("; "+t)
    def label(s,l): s.lines.append(l+":")
    def nop(s,n):
        while n>0:
            k=min(n,16); s.raw(f"s_nop {k-1}",k); n-=k; s.nops+=k
    def _need(s,p,dist):
        gap=s.pos-p-1
        return max(0,dist-gap)
    def _pad(s,reqs):
        n=max(reqs) if reqs else 0
        if n>0: s.nop(n)
    def salu(s,t,m0=False):
        s.raw(t)
        if m0: s.m0=s.pos-1
    def valu(s,t,w=(),r=(),trans=False,perm=False,sr=(),swr=(),dot=False,rfl=False,dpp=False):
        q=[0]
        for x in list(r)+list(w):
            if x in s.mw: q.append(s._need(s.mw[x][0],12))
        for x in w:
            if x in s.mc: q.append(s._need(s.mc[x],7))
            if x in s.st: q.append(s._need(s.st[x],2))
        for x in r:
            if x in s.tw and not trans: q.append(s._need(s.tw[x],1))
            if (perm or dpp) and x in s.vw: q.append(s._need(s.vw[x],2))
            if rfl and x in s.vw: q.append(s._need(s.vw[x],1))
            if x in s.dw and not dot: q.append(s._need(s.dw[x],3))
        for x in w:
            if x in s.dw and not dot: q.append(s._need(s.dw[x],3))
        for x in sr:
            if x in s.sw: q.append(s._need(s.sw[x],2))
        s._pad(q)
        s.raw(t); p=s.pos-1
        for x in w:
            s.vw[x]=p; s.mw.pop(x,None); s.tw.pop(x,None); s.dw.pop(x,None)
            if trans: s.tw[x]=p
            if dot: s.dw[x]=p
        for x in swr: s.sw[x]=p
    def mfma(s,d,a,b,c=None):
        q=[0]
        A=range(a,a+4); B=range(b,b+4); D=range(d,d+16)
        for x in list(A)+list(B):
            if x in s.vw: q.append(s._need(s.vw[x],2))
            if x in s.mw: q.append(s._need(s.mw[x][0],12))
        if c is not None:
            assert c==d
            for x in D:
                if x in s.vw: q.append(s._need(s.vw[x],2))
                if x in s.mw and s.mw[x][1]!=d: q.append(s._need(s.mw[x][0],10))
        s._pad(q)
        cs=f"v[{d}:{d+15}]" if c is not None else "0"
        s.raw(f"v_mfma_f32_32x32x16_bf16 v[{d}:{d+15}], v[{a}:{a+3}], v[{b}:{b+3}], {cs}"); p=s.pos-1
        for x in D:
            s.mw[x]=(p,d); s.vw.pop(x,None)
            if c is not None: s.mc[x]=p
    def ds(s,t,tag,w=(),r=()):
        q=[0]
        for x in list(r)+list(w):
            if x in s.mw: q.append(s._need(s.mw[x][0],12))
        s._pad(q)
        s.raw(t); s.lds.append(tag)
        for x in w: s.vw.pop(x,None); s.mw.pop(x,None)
        assert len(s.lds)<=64
    def vmem(s,t,tag,w=(),r=(),sr=(),store=(),dma=False,count=True):
        q=[0]
        for x in list(r)+list(w)+list(store):
            if x in s.mw: q.append(s._need(s.mw[x][0],12))
        for x in sr:
            if x in s.sw: q.append(s._need(s.sw[x],5))
        if dma: q.append(s._need(s.m0,1))
        s._pad(q)
        s.raw(t); p=s.pos-1
        if count: s.vm.append(tag)
        for x in store: s.st[x]=p
        for x in w: s.vw.pop(x,None); s.mw.pop(x,None)
    def _cnt(s,q,tags):
        last=-1
        for i,t in enumerate(q):
            if t in tags: last=i
        return last
    def need(s,lds=(),vm=()):
        parts=[]
        if lds:
            i=s._cnt(s.lds,set(lds))
            if i>=0:
                n=len(s.lds)-1-i
                n=min(n,15)
                parts.append(f"lgkmcnt({n})"); s.lds=s.lds[len(s.lds)-n:] if n else []
        if vm:
            i=s._cnt(s.vm,set(vm))
            if i>=0:
                n=len(s.vm)-1-i
                n=min(n,63)
                parts.insert(0,f"vmcnt({n})"); s.vm=s.vm[len(s.vm)-n:] if n else []
        if parts: s.raw("s_waitcnt "+" ".join(parts))
    def wait_all(s,lds=False,vm=False):
        parts=[]
        if vm: parts.append("vmcnt(0)"); s.vm=[]
        if lds: parts.append("lgkmcnt(0)"); s.lds=[]
        s.raw("s_waitcnt "+" ".join(parts))
    def text(s): return "\n".join(s.lines)
def R(a,n): return list(range(a,a+n))
```

```python
import sys, json
from emit import Emit, R
NAME="concat_heads__gqa_block_cached__mha_block_cached__near_ridge"
opt=dict(RING=4, ROT1="full", STAMP=0, CLR0=2, PRIO=0)
for a in sys.argv[1:]:
    k,v=a.split("="); opt[k]=int(v) if v.lstrip("-").isdigit() else v
RING=opt["RING"]; STAMP=opt["STAMP"]
NST=19
PB=0; INB=0x400000; IN9=0xC00000; STB=0xC800000
SLOT=32768
def slot(s): return (s%RING)*SLOT

sWAVE,sBR,sRB,sH,sHQ,sCB,sW,sGQ,sBL=3,4,5,6,7,8,9,10,11
X,K,V,WQ,WO,OUT,DBG,WS=12,16,20,24,28,32,36,40
def srd(b): return f"s[{b}:{b+3}]"

e=Emit()
hdr=open("cdna_kernels/"+NAME+".s.ref").read().split("; Override launch")[0]
top=hdr+f"; @launch grid=(256,1,1) block=(512,1,1) lds={RING*SLOT}\n"
top+=f'.amdgcn_target "amdgcn-amd-amdhsa--gfx950"\n.text\n.globl {NAME}_kernel\n.p2align 8\n.type {NAME}_kernel,@function\n{NAME}_kernel:\n'

S=e.salu
S("s_cmp_ge_u32 s2, 256"); S("s_cbranch_scc1 L_end")
if STAMP: S("s_memrealtime s[58:59]")
S("s_bfe_u32 s4, s2, 0x10002")
S("s_mul_i32 s44, s4, 40"); S("s_add_u32 s44, s0, s44"); S("s_addc_u32 s45, s1, 0")
for d,off in ((X,0),(K,8),(V,16),(WQ,24),(WO,32)): S(f"s_load_dwordx2 s[{d}:{d+1}], s[44:45], {off}")
for d,off in ((OUT,80),(DBG,88),(WS,96)): S(f"s_load_dwordx2 s[{d}:{d+1}], s[0:1], {off}")
e.valu("v_lshrrev_b32 v1, 6, v0",w=[1],r=[0])
S("s_bfe_u32 s5, s2, 0x20003")
S("s_lshr_b32 s46, s2, 5")
S("s_and_b32 s6, s2, 3"); S("s_lshl_b32 s6, s6, 3"); S("s_add_u32 s6, s6, s46")
e.valu("v_readfirstlane_b32 s3, v1",r=[1],rfl=True,swr=["s3"])
S("s_lshr_b32 s7, s6, 2"); S("s_and_b32 s8, s6, 3")
S("s_sub_u32 s10, 1, s4"); S("s_add_u32 s11, s4, 17")
e.valu("v_and_b32 v0, 63, v0",w=[0],r=[0])
S("s_and_b32 s9, s3, 3")
for d,n in ((X,512*1152),(WQ,576*8192),(WO,576*8192),(OUT,512*2304),(DBG,256),(WS,0x10000000)):
    S(f"s_mov_b32 s{d+2}, {n}")
S(f"s_lshl_b32 s{K+2}, 0x200000, s4"); S(f"s_mov_b32 s{V+2}, s{K+2}")
for d in (X,K,V,WQ,WO,OUT,DBG,WS): S(f"s_mov_b32 s{d+3}, 0x00020000")
S("s_lshl_b32 s47, s4, 2"); S("s_add_u32 s47, s47, s5")
sINB,sIN9=48,49
S("s_lshl_b32 s48, s47, 2"); S("s_add_u32 s48, s48, s8"); S("s_lshl_b32 s48, s48, 18"); S(f"s_add_u32 s48, s48, {INB}")
S("s_lshl_b32 s49, s47, 19"); S(f"s_add_u32 s49, s49, {IN9}")
S("s_cmp_ge_u32 s3, 4"); S("s_cbranch_scc1 L_loader")

aR=R(2,4); aT=R(6,4); aT9=R(10,2); vL16=12; vO9=13; vT0=14; vT1=15
T=16; Rdb=32; Rbig=40; accG=72; outA=136; pk=200; Pown=232; o9p=240
Vv=e.valu
if opt["PRIO"]: S("s_setprio 2")
Vv("v_and_b32 v14, 31, v0",w=[14],r=[0])
Vv("v_lshrrev_b32 v15, 5, v0",w=[15],r=[0])
Vv("v_lshlrev_b32 v12, 4, v0",w=[12],r=[0])
Vv("v_lshlrev_b32 v13, 4, v14",w=[13],r=[14])
Vv("v_lshl_or_b32 v13, v15, 14, v13",w=[13],r=[13,15])
Vv("v_bfe_u32 v16, v0, 1, 3",w=[16],r=[0])
Vv("v_xor_b32 v16, v16, v15",w=[16],r=[16,15])
Vv("v_lshlrev_b32 v16, 4, v16",w=[16],r=[16])
Vv("v_lshl_or_b32 v16, v14, 7, v16",w=[16],r=[16,14])
S("s_lshl_b32 s44, s9, 12")
Vv("v_add_u32 v2, s44, v16",w=[2],r=[16])
for ks in range(1,4): Vv(f"v_xor_b32 v{2+ks}, {32*ks}, v2",w=[2+ks],r=[2])
Vv("v_bfe_u32 v16, v0, 2, 2",w=[16],r=[0])
Vv("v_and_b32 v17, 1, v0",w=[17],r=[0]); Vv("v_bfe_u32 v18, v0, 1, 1",w=[18],r=[0])
Vv("v_lshlrev_b32 v17, 4, v17",w=[17],r=[17]); Vv("v_lshl_or_b32 v17, v18, 3, v17",w=[17],r=[17,18])
Vv("v_bfe_u32 v18, v0, 4, 1",w=[18],r=[0]); Vv("v_lshl_or_b32 v17, v18, 5, v17",w=[17],r=[17,18])
Vv("v_lshl_or_b32 v18, v15, 3, v16",w=[18],r=[15,16])
Vv("v_lshl_or_b32 v19, v18, 8, v17",w=[19],r=[18,17])
Vv("v_lshl_or_b32 v19, v16, 6, v19",w=[19],r=[16,19])
Vv("v_add_u32 v6, 0x4000, v19",w=[6],r=[19])
for t in range(1,4): Vv(f"v_xor_b32 v{6+t}, {64*t}, v6",w=[6+t],r=[6])
Vv("v_lshl_or_b32 v19, v18, 7, v17",w=[19],r=[18,17])
Vv("v_lshrrev_b32 v16, 1, v16",w=[16],r=[16])
Vv("v_lshl_or_b32 v19, v16, 6, v19",w=[19],r=[16,19])
Vv(f"v_add_u32 v10, {slot(12)}, v19",w=[10],r=[19])
Vv("v_xor_b32 v11, 64, v10",w=[11],r=[10])
sP,sM,s9b,sC,sMIN=50,51,52,53,54
S("s_lshl_b32 s50, s47, 2"); S("s_add_u32 s50, s50, s9"); S("s_lshl_b32 s50, s50, 16")
S("s_lshl_b32 s44, s9, 16"); S("s_add_u32 s51, s48, s44"); S("s_lshl_b32 s44, s7, 10"); S("s_add_u32 s51, s51, s44")
S("s_lshl_b32 s44, s9, 17"); S("s_add_u32 s52, s49, s44"); S("s_lshl_b32 s44, s6, 9"); S("s_add_u32 s52, s52, s44")
import math, struct
cval=struct.unpack("<I",struct.pack("<f",(128**-0.5)*math.log2(math.e)))[0]
S(f"s_mov_b32 s53, {cval:#x}"); S("s_mov_b32 s54, 0xfffffffe")
e.wait_all(lds=True)

cur=[0]
def advance(s):
    d=slot(s)-cur[0]; cur[0]=slot(s)
    for r in aR+aT:
        if d>=0: Vv(f"v_add_u32 v{r}, {d}, v{r}",w=[r],r=[r])
        else: Vv(f"v_subrev_u32 v{r}, {-d}, v{r}",w=[r],r=[r])
def kind(s):
    if s<9: return "P1"
    if s==9: return "K"
    if s==12: return "W9"
    return "P2"
def Rreg(s,ks):
    if s in (10,11): return Rbig+16*(s-10)+4*ks
    return Rdb+4*(ks&1)
def rd_R(dst,ks,off,tag):
    e.ds(f"ds_read_b128 v[{dst}:{dst+3}], v{aR[ks]} offset:{off}",tag,w=R(dst,4),r=[aR[ks]])
def rd_T(dst,a,off0,off1,tag):
    e.ds(f"ds_read_b64_tr_b16 v[{dst}:{dst+1}], v{a} offset:{off0}",tag,w=R(dst,2),r=[a])
    e.ds(f"ds_read_b64_tr_b16 v[{dst+2}:{dst+3}], v{a} offset:{off1}",tag,w=R(dst+2,2),r=[a])
def reads_for(s,ks):
    k=kind(s)
    if k in("P1","P2"):
        return (lambda: rd_R(Rreg(s,ks),ks,0,("R",s,ks)),
                [(lambda t=t: rd_T(T+4*t,aT[t],ks*4096,ks*4096+1024,("T",s,ks,t))) for t in range(4)])
    if k=="K":
        def two(t):
            for kk in (2*t,2*t+1): rd_R(Rbig+4*kk,kk%4,(kk//4)*16384,("K",kk))
        return (lambda: None,[(lambda t=t: two(t)) for t in range(4)])
    if k=="W9":
        return (lambda: None,
                [(lambda t=t: rd_T(T+4*t,aT9[t%2],(2*ks+t//2)*2048,(2*ks+t//2)*2048+512,("T",s,ks,t))) for t in range(4)])
def cvt_tile(src,dst,mn=False):
    for i in range(8):
        Vv(f"v_cvt_pk_bf16_f32 v{dst+i}, v{src+2*i}, v{src+2*i+1}",w=[dst+i],r=[src+2*i,src+2*i+1])
    if mn:
        for i in range(8): Vv(f"v_min_u32 v{dst+i}, s54, v{dst+i}",w=[dst+i],r=[dst+i])
def barrier(): e.raw("s_barrier")
def stage(s,pre={},post={},atbar=None,nxt=True):
    k=kind(s)
    for ks in range(4):
        if ks==3:
            if nxt:
                advance(s+1)
                if atbar and atbar[0]: atbar[0]()
                barrier()
                if atbar and atbar[1]: atbar[1]()
                nr,nt=reads_for(s+1,0)
            else: nr,nt=(lambda:None),[(lambda:None)]*4
        else: nr,nt=reads_for(s,ks+1)
        nr()
        for t in range(4):
            for f in pre.get((ks,t),[]): f()
            e.need(lds=[("T",s,ks,t),("R",s,ks)])
            if k=="P1":   e.mfma(accG+16*t,T+4*t,Rreg(s,ks),None if (s==0 and ks==0) else accG+16*t)
            elif k=="P2":
                first=(ks==0 and (s in (10,13,15,17)))
                e.mfma(accG+16*t,Rreg(s,ks),T+4*t,None if first else accG+16*t)
            else:
                kk=2*ks+t//2; d=accG+16*(t%2)
                e.mfma(d,Rbig+4*kk,T+4*t,None if kk==0 else d)
            nt[t]()
            for f in post.get((ks,t),[]): f()
def PM(t,q,P,first=False,dst=None,src=None,vm=None):
    def f():
        if vm: e.need(vm=[vm])
        d=(outA+16*t) if dst is None else dst
        e.mfma(d,(pk+8*t+4*q) if src is None else src,P+4*q,None if (first and q==0) else d)
    return f

barrier()
nr,nt=reads_for(0,0); nr()
for t in range(4): nt[t]()
for s in range(9): stage(s)
Sx=outA; tm=outA+16; tm2=outA+17; E=outA+32
for t in range(4):
    cvt_tile(accG+16*t,pk+8*t)
    for kk in (2*t,2*t+1):
        e.need(lds=[("K",kk)])
        e.mfma(Sx,Rbig+4*kk,pk+4*kk,None if kk==0 else Sx)
Vv(f"v_max3_f32 v{tm}, v{Sx}, v{Sx+1}, v{Sx+2}",w=[tm],r=[Sx,Sx+1,Sx+2])
Vv(f"v_max3_f32 v{tm2}, v{Sx+3}, v{Sx+4}, v{Sx+5}",w=[tm2],r=[Sx+3,Sx+4,Sx+5])
for i,d in ((6,tm),(8,tm2),(10,tm),(12,tm2)):
    Vv(f"v_max3_f32 v{d}, v{d}, v{Sx+i}, v{Sx+i+1}",w=[d],r=[d,Sx+i,Sx+i+1])
Vv(f"v_max3_f32 v{tm}, v{tm}, v{Sx+14}, v{Sx+15}",w=[tm],r=[tm,Sx+14,Sx+15])
Vv(f"v_max_f32 v{tm}, v{tm}, v{tm2}",w=[tm],r=[tm,tm2])
Vv(f"v_mov_b32 v{tm2}, v{tm}",w=[tm2],r=[tm])
Vv(f"v_permlane32_swap_b32 v{tm}, v{tm2}",w=[tm,tm2],r=[tm,tm2],perm=True)
Vv(f"v_max_f32 v{tm}, v{tm}, v{tm2}",w=[tm],r=[tm,tm2])
Vv(f"v_mul_f32 v{tm}, s53, v{tm}",w=[tm],r=[tm])
for i in range(16): Vv(f"v_fma_f32 v{E+i}, v{Sx+i}, s53, -v{tm}",w=[E+i],r=[Sx+i,tm])
for i in range(16): Vv(f"v_exp_f32 v{E+i}, v{E+i}",w=[E+i],r=[E+i],trans=True)
sm=outA+18
for i in range(4): Vv(f"v_add_f32 v{sm+i}, v{E+i}, v{E+4+i}",w=[sm+i],r=[E+i,E+4+i])
for j in (8,12):
    for i in range(4): Vv(f"v_add_f32 v{sm+i}, v{sm+i}, v{E+j+i}",w=[sm+i],r=[sm+i,E+j+i])
Vv(f"v_add_f32 v{sm}, v{sm}, v{sm+1}",w=[sm],r=[sm,sm+1]); Vv(f"v_add_f32 v{sm+2}, v{sm+2}, v{sm+3}",w=[sm+2],r=[sm+2,sm+3])
Vv(f"v_add_f32 v{sm}, v{sm}, v{sm+2}",w=[sm],r=[sm,sm+2])
Vv(f"v_mov_b32 v{tm2}, v{sm}",w=[tm2],r=[sm])
Vv(f"v_permlane32_swap_b32 v{sm}, v{tm2}",w=[sm,tm2],r=[sm,tm2],perm=True)
Vv(f"v_add_f32 v{sm}, v{sm}, v{tm2}",w=[sm],r=[sm,tm2])
Vv(f"v_rcp_f32 v{sm}, v{sm}",w=[sm],r=[sm],trans=True)
S("s_lshl_b32 s44, s6, 11"); S("s_add_u32 s44, s44, s50")
for i in range(16): Vv(f"v_mul_f32 v{E+i}, v{E+i}, v{sm}",w=[E+i],r=[E+i,sm])
cvt_tile(E,Pown)
for q in range(2):
    e.vmem(f"buffer_store_dwordx4 v[{Pown+4*q}:{Pown+4*q+3}], v{vL16}, {srd(WS)}, s44 offen offset:{1024*q} sc1","Pst",r=[vL16],store=R(Pown+4*q,4))
if STAMP: S("s_memrealtime s[60:61]"); e.wait_all(lds=True)
advance(10); barrier()
nr,nt=reads_for(10,0); nr()
for t in range(4): nt[t]()
stage(10,atbar=(lambda: e.need(vm=["Pst"]),None))
stage(11)
C=lambda t,d=None: (lambda: cvt_tile(accG+16*t,pk+8*t))
stage(12,pre={(0,0):[C(0)],(0,1):[C(1)]},
      post={(0,2):[C(2)],(0,3):[C(3)],(1,0):[PM(0,0,Pown,True),PM(0,1,Pown)],(1,2):[PM(1,0,Pown,True),PM(1,1,Pown)],
            (2,0):[PM(2,0,Pown,True),PM(2,1,Pown)],(2,2):[PM(3,0,Pown,True),PM(3,1,Pown)]})
def pub9():
    for t9 in range(2):
        for q in range(2):
            S(f"s_add_u32 s44, s52, {(4*t9+2*q)*16384}")
            r0=o9p+8*t9+4*q
            e.vmem(f"buffer_store_dwordx4 v[{r0}:{r0+3}], v{vO9}, {srd(WS)}, s44 offen sc1","O9st",r=[vO9],store=R(r0,4))
    for j in range(1,4):
        S(f"s_add_u32 s44, s8, {j}"); S("s_and_b32 s44, s44, 3"); S("s_lshl_b32 s45, s7, 2"); S("s_add_u32 s44, s44, s45")
        S("s_lshl_b32 s44, s44, 11"); S("s_add_u32 s44, s44, s50")
        for q in range(2):
            r0=Rbig+8*j+4*q
            e.vmem(f"buffer_load_dwordx4 v[{r0}:{r0+3}], v{vL16}, {srd(WS)}, s44 offen offset:{1024*q} sc1",("P",j),w=R(r0,4),r=[vL16])
stage(13,pre={(0,0):[C(0)],(0,1):[C(1)]},
      post={(0,3):[PM(0,0,Pown,True,dst=Rbig),PM(0,1,Pown,dst=Rbig)],(1,0):[PM(1,0,Pown,True,dst=Rbig+16),PM(1,1,Pown,dst=Rbig+16)],
            (2,0):[lambda: cvt_tile(Rbig,o9p,True)],(2,2):[lambda: cvt_tile(Rbig+16,o9p+8,True)]},
      atbar=(None,pub9))
stage(14)
allC={(0,t):[C(t)] for t in range(4)}
def pms(j,ks0):
    P=Rbig+8*j
    return {(ks0,0):[PM(0,0,P,vm=("P",j)),PM(0,1,P)],(ks0,2):[PM(1,0,P),PM(1,1,P)],(ks0+1,0):[PM(2,0,P),PM(2,1,P)],(ks0+1,2):[PM(3,0,P),PM(3,1,P)]}
stage(15,pre=allC)
stage(16,post=pms(1,1))
stage(17,pre=allC,post=pms(2,2))
stage(18,nxt=False)
P3=Rbig+24
def fin(t):
    cvt_tile(outA+16*t,accG+16*t,True)
    for q in range(2):
        S(f"s_add_u32 s44, s51, {(2*t+q)*8192}")
        r0=accG+16*t+4*q
        e.vmem(f"buffer_store_dwordx4 v[{r0}:{r0+3}], v{vL16}, {srd(WS)}, s44 offen sc1","Mst",r=[vL16],store=R(r0,4))
for t in range(4):
    C(t)(); PM(t,0,P3,vm=("P",3))(); PM(t,1,P3)()
    if t>=2: fin(t-2)
fin(2); fin(3)
barrier()
if STAMP:
    S("s_memrealtime s[62:63]"); e.wait_all(vm=True); S("s_memrealtime s[64:65]"); e.wait_all(lds=True)
    S("s_cmp_lg_u32 s9, 0"); S("s_cbranch_scc1 L_end")
    for i in range(8): Vv(f"v_writelane_b32 v1, s{58+i}, {i}",w=[1])
    Vv("v_lshlrev_b32 v2, 2, v0",w=[2],r=[0])
    S("s_lshl_b32 s44, s2, 8"); S(f"s_add_u32 s44, s44, {STB+192}"); S("s_mov_b64 exec, 0xff")
    e.vmem(f"buffer_store_dword v1, v2, {srd(WS)}, s44 offen","x",r=[1,2])
e.raw("s_endpgm")

e.label("L_loader"); e.reset_haz(); e.lds=[]; e.vm=[]
vX,vV,vQ,vO,v9=R(2,4),R(6,4),R(10,4),R(14,4),R(18,4)
vL16=22; vONE=24
Vv("v_lshrrev_b32 v28, 3, v0",w=[28],r=[0])
Vv("v_and_b32 v29, 7, v0",w=[29],r=[0])
Vv("v_lshrrev_b32 v30, 4, v0",w=[30],r=[0])
Vv("v_and_b32 v31, 15, v0",w=[31],r=[0])
S("s_movk_i32 s44, 1152")
Vv("v_xor_b32 v32, v29, v30",w=[32],r=[29,30]); Vv("v_lshlrev_b32 v32, 4, v32",w=[32],r=[32])
Vv("v_mad_u32_u24 v33, v28, s44, v32",w=[33],r=[28,32])
Vv("v_lshl_or_b32 v34, v28, 8, v32",w=[34],r=[28,32])
Vv("v_lshlrev_b32 v35, 2, v30",w=[35],r=[30]); Vv("v_xor_b32 v35, v35, v31",w=[35],r=[35,31]); Vv("v_lshlrev_b32 v35, 4, v35",w=[35],r=[35])
Vv("v_lshl_or_b32 v36, v30, 13, v35",w=[36],r=[30,35])
Vv("v_mad_u32_u24 v37, v30, s44, v35",w=[37],r=[30,35])
Vv("v_and_b32 v38, 1, v30",w=[38],r=[30]); Vv("v_lshlrev_b32 v38, 2, v38",w=[38],r=[38]); Vv("v_xor_b32 v38, v38, v29",w=[38],r=[38,29]); Vv("v_lshlrev_b32 v38, 4, v38",w=[38],r=[38])
Vv("v_mad_u32_u24 v38, v28, s44, v38",w=[38],r=[28,38])
Vv("v_xor_b32 v39, 64, v33",w=[39],r=[33]); Vv("v_xor_b32 v40, 64, v34",w=[40],r=[34])
for j in range(4):
    Vv(f"v_add_u32 v{vX[j]}, {j*(9216-1024)}, v{33 if j%2==0 else 39}",w=[vX[j]],r=[33,39])
    Vv(f"v_add_u32 v{vQ[j]}, {j*(32768-1024)}, v36",w=[vQ[j]],r=[36])
sXb,sQb,sKV,sL,sR1,sOb0,sT1,sT2=50,51,52,53,54,55,56,57
S("s_mul_i32 s50, s5, 147456"); S("s_mul_i32 s44, s9, 36864"); S("s_add_u32 s50, s50, s44")
S("s_lshl_b32 s51, s9, 17"); S("s_lshl_b32 s44, s6, 8"); S("s_add_u32 s51, s51, s44")
S("s_lshl_b32 s53, s9, 12")
if opt["ROT1"]=="full":
    S("s_lshl_b32 s54, s5, 1"); S("s_add_u32 s54, s54, s46"); S("s_cmp_ge_u32 s54, 9"); S("s_cselect_b32 s44, 9, 0"); S("s_sub_u32 s54, s54, s44")
elif opt["ROT1"]=="none": S("s_mov_b32 s54, 0")
elif opt["ROT1"]=="half":
    S("s_lshr_b32 s54, s5, 1"); S("s_lshl_b32 s54, s54, 2"); S("s_lshr_b32 s44, s46, 1"); S("s_add_u32 s54, s54, s44")
e.wait_all(lds=True)
def dma(v,sr,so,j,tag): e.vmem(f"buffer_load_dwordx4 v{v}, {srd(sr)}, s{so} offen offset:{1024*j} lds",tag,r=[v],dma=True)
def setm0(off): S(f"s_add_u32 m0, s53, {off}",m0=True)
def issue(s):
    k=kind(s); tag=("L",s)
    if k=="P1":
        S("s_lshl_b32 s56, s54, 7"); S("s_add_u32 s56, s56, s50"); setm0(slot(s))
        S("s_lshl_b32 s57, s54, 19"); S("s_add_u32 s57, s57, s51")
        for j in range(4): dma(vX[j],X,56,j,tag)
        setm0(slot(s)+16384)
        S("s_add_u32 s54, s54, 1");
        for j in range(4): dma(vQ[j],WQ,57,j,tag)
        S("s_cmp_eq_u32 s54, 9"); S("s_cselect_b32 s54, 0, s54")
    elif k=="K":
        S("s_lshr_b32 s56, s6, s10"); S("s_lshl_b32 s56, s56, 13"); S("s_add_u32 s56, s56, s52"); setm0(slot(s)); S("s_add_u32 s57, s56, 128")
        for j in range(4): dma(vV[j],K,56,j,tag)
        setm0(slot(s)+16384); e.nop(1)
        for j in range(4): dma(vV[j],K,57,j,tag)
    elif k=="W9":
        S("s_lshl_b32 s56, s6, 2"); S("s_add_u32 s56, s56, s9"); S(f"s_mul_i32 s56, s56, {32*1152}"); setm0(slot(s)); S("s_add_u32 s56, s56, 1024")
        for j in range(4): dma(v9[j],WO,56,j,tag)
    else:
        js,half={10:(0,0),11:(0,1),13:(1,0),14:(1,1),15:(2,0),16:(2,1),17:(3,0),18:(3,1)}[s]
        S(f"s_add_u32 s44, s8, {js}"); S("s_and_b32 s44, s44, 3"); S("s_lshl_b32 s45, s7, 2"); S("s_add_u32 s44, s44, s45")
        S("s_lshr_b32 s56, s44, s10"); S("s_lshl_b32 s56, s56, 13"); S("s_add_u32 s56, s56, s52")
        if half: S("s_add_u32 s56, s56, 128")
        setm0(slot(s))
        S(f"s_mul_i32 s57, s44, {128*1152}"); S("s_add_u32 s57, s57, s55")
        for j in range(4): dma(vV[j],V,56,j,tag)
        setm0(slot(s)+16384)
        if half: S(f"s_add_u32 s57, s57, {64*1152}")
        else: e.nop(1)
        for j in range(4): dma(vO[j],WO,57,j,tag)
for s in range(RING-2): issue(s)
for j in range(4):
    Vv(f"v_add_u32 v{vV[j]}, {j*1024}, v{34 if j%2==0 else 40}",w=[vV[j]],r=[34,40])
    Vv(f"v_add_u32 v{vO[j]}, {j*(4608-1024)}, v37",w=[vO[j]],r=[37])
    Vv(f"v_add_u32 v{v9[j]}, {j*(9216-1024)}, v38",w=[v9[j]],r=[38])
Vv("v_lshlrev_b32 v22, 4, v0",w=[22],r=[0]); Vv("v_lshlrev_b32 v23, 2, v0",w=[23],r=[0])
for i in range(4): Vv(f"v_mov_b32 v{vONE+i}, -1",w=[vONE+i])
S("s_lshl_b32 s52, s5, 2"); S("s_add_u32 s52, s52, s9"); S("s_lshl_b32 s52, s52, s11")
S(f"s_mul_i32 s55, s9, {16*1152}"); S("s_lshl_b32 s44, s8, 8"); S("s_add_u32 s55, s55, s44")
S("s_lshl_b32 s44, s7, 15"); S("s_add_u32 s48, s48, s44"); S("s_lshl_b32 s44, s9, 13"); S("s_add_u32 s48, s48, s44")
S("s_lshl_b32 s44, s6, 14"); S("s_add_u32 s49, s49, s44")
S("s_lshl_b32 s47, s47, 5")
clears=[(48,0),(48,4096),(49,None)]
def clear(g):
    b,o=clears[g]
    if o is None: S(f"s_add_u32 s44, s{b}, s53")
    else: S(f"s_add_u32 s44, s{b}, {o}")
    for j in range(4):
        e.vmem(f"buffer_store_dwordx4 v[{vONE}:{vONE+3}], v{vL16}, {srd(WS)}, s44 offen offset:{1024*j} sc1","clr",r=[vL16],store=R(vONE,4))
vF=41
def stamp(i):
    if STAMP: S(f"s_memrealtime s[{60+2*i}:{61+2*i}]")
for s in range(NST):
    e.need(vm=[("L",s)])
    if s==14:
        e.comment("flag check (loader 0)")
        S("s_cmp_lg_u32 s9, 0"); S("s_cbranch_scc1 L_flag_ok")
        S("s_mov_b64 exec, 0xff"); S("s_mov_b32 s44, 0x01010101"); S("s_mov_b32 s45, 0")
        e.label("L_flag_poll")
        Vv(f"v_cmp_ne_u32 vcc, s44, v{vF}",r=[vF],swr=["vcc"])
        S("s_cbranch_vccz L_flag_done")
        S("s_add_u32 s45, s45, 1"); S("s_cmp_ge_u32 s45, 0x200000"); S("s_cbranch_scc1 L_flag_done")
        S("s_sleep 2")
        e.raw(f"buffer_load_dword v{vF}, v23, {srd(DBG)}, s47 offen sc1"); e.raw("s_waitcnt vmcnt(0)")
        S("s_branch L_flag_poll")
        e.label("L_flag_done"); S("s_mov_b64 exec, -1")
        e.label("L_flag_ok")
    barrier(); stamp(s)
    if s==13:
        S("s_cmp_lg_u32 s9, 0"); S("s_cbranch_scc1 L_nopoll")
        S("s_mov_b64 exec, 0xff")
        e.vmem(f"buffer_load_dword v{vF}, v23, {srd(DBG)}, s47 offen sc1","f",w=[vF],r=[23],count=False)
        S("s_mov_b64 exec, -1")
        e.label("L_nopoll")
    if s+RING-2<NST: issue(s+RING-2)
    if s==11:
        S("s_cmp_lg_u32 s9, 0"); S("s_cbranch_scc1 L_noflag")
        S("s_mov_b64 exec, 1"); S("s_add_u32 s44, s47, s6")
        Vv("v_mov_b32 v42, 1",w=[42])
        e.vmem(f"buffer_store_byte v42, v23, {srd(DBG)}, s44 offen sc1","f",r=[42,23],count=False)
        S("s_mov_b64 exec, -1")
        e.label("L_noflag")
    if opt["CLR0"]<=s<opt["CLR0"]+3: clear(s-opt["CLR0"])
D=48; ACC=96; MX=104; TMP=105
Vv("v_lshlrev_b32 v43, 9, v28",w=[43],r=[28]); Vv("v_lshl_or_b32 v43, v29, 4, v43",w=[43],r=[29,43])
S("s_lshl_b32 s44, s9, 7"); S("s_add_u32 s49, s49, s44")
S("s_mov_b32 s56, 0x3f80"); S("s_mov_b32 s57, 0x3f800000"); S("s_mov_b32 s45, 0")
def reduce_loop(lbl,n,vaddr,sbase,step):
    e.label(lbl); e.reset_haz(); e.vm=[]
    for i in range(n):
        o=i*step
        S(f"s_add_u32 s44, s{sbase}, {o&~4095}")
        e.vmem(f"buffer_load_dwordx4 v[{D+4*i}:{D+4*i+3}], v{vaddr}, {srd(WS)}, s44 offen offset:{o&4095} sc1",("D",i),w=R(D+4*i,4),r=[vaddr])
    for i in range(8): Vv(f"v_mov_b32 v{ACC+i}, 0",w=[ACC+i])
    Vv(f"v_mov_b32 v{MX}, 0",w=[MX])
    for i in range(n):
        e.need(vm=[("D",i)])
        d=D+4*i
        Vv(f"v_max3_u32 v{MX}, v{MX}, v{d}, v{d+1}",w=[MX],r=[MX,d,d+1]); Vv(f"v_max3_u32 v{MX}, v{MX}, v{d+2}, v{d+3}",w=[MX],r=[MX,d+2,d+3])
        for c in range(4):
            Vv(f"v_dot2c_f32_bf16 v{ACC+2*c}, s56, v{d+c}",w=[ACC+2*c],r=[ACC+2*c,d+c],dot=True)
            Vv(f"v_dot2c_f32_bf16 v{ACC+2*c+1}, s57, v{d+c}",w=[ACC+2*c+1],r=[ACC+2*c+1,d+c],dot=True)
    Vv(f"v_cmp_eq_u32 vcc, -1, v{MX}",r=[MX],swr=["vcc"])
    S(f"s_cbranch_vccz {lbl}_ok")
    S("s_add_u32 s45, s45, 1"); S("s_cmp_ge_u32 s45, 0x200000"); S(f"s_cbranch_scc1 {lbl}_ok")
    S("s_sleep 1"); S(f"s_branch {lbl}")
    e.label(lbl+"_ok")
reduce_loop("L_r9",4,43,49,4096)
e.nop(3)
for i in range(8): Vv(f"v_add_f32_dpp v{ACC+i}, v{ACC+i}, v{ACC+i} row_ror:8 row_mask:0xf bank_mask:0xf",w=[ACC+i],r=[ACC+i],dpp=True)
for op in ("v_permlane16_swap_b32","v_permlane32_swap_b32"):
    for i in range(8): Vv(f"v_mov_b32 v{D+i}, v{ACC+i}",w=[D+i],r=[ACC+i])
    for i in range(8): Vv(f"{op} v{ACC+i}, v{D+i}",w=[ACC+i,D+i],r=[ACC+i,D+i],perm=True)
    for i in range(8): Vv(f"v_add_f32 v{ACC+i}, v{ACC+i}, v{D+i}",w=[ACC+i],r=[ACC+i,D+i])
for i in range(4): Vv(f"v_cvt_pk_bf16_f32 v{D+8+i}, v{ACC+2*i}, v{ACC+2*i+1}",w=[D+8+i],r=[ACC+2*i,ACC+2*i+1])
S("s_lshl_b32 s44, s5, 2"); S("s_lshr_b32 s45, s6, 3"); S("s_add_u32 s44, s44, s45"); S("s_lshl_b32 s44, s44, 2"); S("s_add_u32 s44, s44, s9")
S(f"s_mul_i32 s44, s44, {8*2304}"); S("s_mul_i32 s45, s4, 1152"); S("s_add_u32 s44, s44, s45"); S("s_and_b32 s45, s6, 7"); S("s_lshl_b32 s45, s45, 4"); S("s_add_u32 s44, s44, s45")
S("s_movk_i32 s45, 2304")
Vv("v_mul_u32_u24 v44, s45, v0",w=[44],r=[0])
S("s_mov_b64 exec, 0xff")
e.vmem(f"buffer_store_dwordx4 v[{D+8}:{D+11}], v44, {srd(OUT)}, s44 offen offset:1024","o9",r=[44],store=R(D+8,4))
S("s_mov_b64 exec, -1")
Vv("v_and_b32 v45, 31, v0",w=[45],r=[0]); Vv("v_mul_u32_u24 v45, s45, v45",w=[45],r=[45]); Vv("v_lshrrev_b32 v46, 5, v0",w=[46],r=[0]); Vv("v_lshl_add_u32 v45, v46, 4, v45",w=[45],r=[45,46])
S("s_lshl_b32 s44, s5, 2"); S("s_lshr_b32 s45, s7, 1"); S("s_add_u32 s44, s44, s45"); S(f"s_mul_i32 s55, s44, {32*2304}")
S("s_mul_i32 s45, s4, 1152"); S("s_add_u32 s55, s55, s45"); S("s_lshl_b32 s45, s8, 8"); S("s_add_u32 s55, s55, s45")
S("s_and_b32 s45, s7, 1"); S("s_lshl_b32 s45, s45, 7"); S("s_add_u32 s55, s55, s45"); S("s_lshl_b32 s45, s9, 5"); S("s_add_u32 s55, s55, s45")
S("s_mov_b32 s45, 0")
barrier(); stamp(19)
reduce_loop("L_rm",8,vL16,48,1024)
e.nop(3)
for i in range(4): Vv(f"v_cvt_pk_bf16_f32 v{D+32+i}, v{ACC+2*i}, v{ACC+2*i+1}",w=[D+32+i],r=[ACC+2*i,ACC+2*i+1])
e.vmem(f"buffer_store_dwordx4 v[{D+32}:{D+35}], v45, {srd(OUT)}, s55 offen","om",r=[45],store=R(D+32,4))
if STAMP:
    S("s_memrealtime s[100:101]"); e.wait_all(lds=True,vm=True)
    S("s_cmp_lg_u32 s9, 0"); S("s_cbranch_scc1 L_end")
    for i in range(44): Vv(f"v_writelane_b32 v1, s{58+i}, {i}",w=[1])
    Vv(f"v_writelane_b32 v1, s45, 44",w=[1])
    S("s_lshl_b32 s44, s2, 8"); S(f"s_add_u32 s44, s44, {STB}"); S("s_mov_b32 exec_lo, -1"); S("s_mov_b32 exec_hi, 0xffff")
    e.vmem(f"buffer_store_dword v1, v23, {srd(WS)}, s44 offen","x",r=[1,23])
e.label("L_end")
e.raw("s_endpgm")
bot=f'''
.section .rodata,"a"
.p2align 6
.amdhsa_kernel {NAME}_kernel
  .amdhsa_next_free_vgpr 256
  .amdhsa_next_free_sgpr 102
  .amdhsa_accum_offset 256
  .amdhsa_group_segment_fixed_size 0
  .amdhsa_kernarg_size 104
  .amdhsa_user_sgpr_count 2
  .amdhsa_user_sgpr_kernarg_segment_ptr 1
  .amdhsa_system_sgpr_workgroup_id_x 1
  .amdhsa_float_denorm_mode_32 3
.end_amdhsa_kernel
'''
sys.stdout.write(top+e.text()+bot)
sys.stderr.write(f"nops inserted: {e.nops}\n")
```

```python
import sys, math, struct
from emit import Emit, R
NAME="concat_heads__gqa_block_cached__mha_block_cached__near_ridge"
opt=dict(RING=4, ROT1="full", STAMP=0, PRIO=0, NODMA=0, NOCOMP=0, NOSYNC=0, FIN="in", ST="sc1")
for a in sys.argv[1:]:
    k,v=a.split("="); opt[k]=int(v) if v.lstrip("-").isdigit() else v
RING=opt["RING"]; STAMP=opt["STAMP"]; K2=opt["FIN"]=="k2"; SYNC=not opt["NOSYNC"]
PST="" if K2 and opt["ST"]=="plain" else " sc1"
NST=19
INB=0x400000; IN9=0xC00000; CNT=0x1000000; STB=0xC800000
SLOT=32768
def slot(s): return (s%RING)*SLOT
X,K,V,WQ,WO,OUT,DBG,WS=12,16,20,24,28,32,36,40
def srd(b): return f"s[{b}:{b+3}]"
e=Emit()
if opt["NOCOMP"]:
    e.mfma=lambda *a,**k: None
    e.ds=lambda *a,**k: None
S=e.salu; Vv=e.valu
KN=NAME+"_kernel"
hdr=open("cdna_kernels/"+NAME+".s.ref").read().split("; Override launch")[0]
if K2: top=hdr+f"; @launch kernel={KN} grid=(256,1,1) block=(512,1,1) lds={RING*SLOT}\n; @launch kernel=red_kernel grid=(256,1,1) block=(512,1,1) lds=0\n"
else: top=hdr+f"; @launch grid=(256,1,1) block=(512,1,1) lds={RING*SLOT}\n"
top+=f'.amdgcn_target "amdgcn-amd-amdhsa--gfx950"\n.text\n.globl {KN}\n.p2align 8\n.type {KN},@function\n{KN}:\n'
def barrier(): e.raw("s_barrier")
def kind(s):
    if s<9: return "P1"
    if s==9: return "K"
    if s==12: return "W9"
    return "P2"

def decode(full=True):
    S("s_bfe_u32 s5, s2, 0x20003"); S("s_lshr_b32 s46, s2, 5")
    S("s_and_b32 s6, s2, 3"); S("s_lshl_b32 s6, s6, 3"); S("s_add_u32 s6, s6, s46")
    Vv("v_readfirstlane_b32 s3, v1",r=[1],rfl=True,swr=["s3"])
    Vv("v_and_b32 v0, 63, v0",w=[0],r=[0])
    S("s_and_b32 s9, s3, 3")
def decode2():
    S("s_lshr_b32 s7, s6, 2"); S("s_and_b32 s8, s6, 3")
    S("s_lshl_b32 s47, s4, 2"); S("s_add_u32 s47, s47, s5")
    S("s_add_u32 s99, s8, s5"); S("s_and_b32 s99, s99, 3")
    S("s_lshl_b32 s48, s47, 2"); S("s_add_u32 s48, s48, s99"); S("s_lshl_b32 s48, s48, 18"); S(f"s_add_u32 s48, s48, {INB}")
    S("s_lshl_b32 s49, s47, 19"); S(f"s_add_u32 s49, s49, {IN9}")
S("s_cmp_ge_u32 s2, 256"); S("s_cbranch_scc1 L_end")
if STAMP: S("s_memrealtime s[56:57]")
S("s_bfe_u32 s4, s2, 0x10002")
S("s_mul_i32 s44, s4, 40"); S("s_add_u32 s44, s0, s44"); S("s_addc_u32 s45, s1, 0")
for d,off in ((X,0),(WQ,24),(K,8),(V,16),(WO,32)): S(f"s_load_dwordx2 s[{d}:{d+1}], s[44:45], {off}")
for d,off in ((WS,96),(OUT,80),(DBG,88)): S(f"s_load_dwordx2 s[{d}:{d+1}], s[0:1], {off}")
Vv("v_lshrrev_b32 v1, 6, v0",w=[1],r=[0])
decode()
for d,n in ((X,512*1152),(WQ,576*8192),(WS,0x10000000)): S(f"s_mov_b32 s{d+2}, {n}"); S(f"s_mov_b32 s{d+3}, 0x00020000")
S("s_cmp_lt_u32 s3, 4"); S("s_cbranch_scc1 L_compute")

vX,vV,vQ,vO,v9=R(2,4),R(6,4),R(10,4),R(14,4),R(18,4)
vL16=22; vL4=23; vSA=24; vSN=25; vCU=26; vEX=27
Vv("v_lshrrev_b32 v28, 3, v0",w=[28],r=[0]); Vv("v_and_b32 v29, 7, v0",w=[29],r=[0])
Vv("v_lshrrev_b32 v30, 4, v0",w=[30],r=[0]); Vv("v_and_b32 v31, 15, v0",w=[31],r=[0])
S("s_movk_i32 s45, 1152")
Vv("v_xor_b32 v32, v29, v30",w=[32],r=[29,30]); Vv("v_lshlrev_b32 v32, 4, v32",w=[32],r=[32])
Vv("v_mad_u32_u24 v2, v28, s45, v32",w=[2],r=[28,32])
Vv("v_lshlrev_b32 v35, 2, v30",w=[35],r=[30]); Vv("v_xor_b32 v35, v35, v31",w=[35],r=[35,31]); Vv("v_lshlrev_b32 v35, 4, v35",w=[35],r=[35])
Vv("v_lshl_or_b32 v10, v30, 13, v35",w=[10],r=[30,35])
Vv("v_xor_b32 v39, 64, v2",w=[39],r=[2])
for j in range(1,4):
    Vv(f"v_add_u32 v{vX[j]}, {j*(9216-1024)}, v{2 if j%2==0 else 39}",w=[vX[j]],r=[2,39])
    Vv(f"v_add_u32 v{vQ[j]}, {j*(32768-1024)}, v10",w=[vQ[j]],r=[10])
S("s_lshl_b32 s52, s5, 2"); S("s_add_u32 s52, s52, s9"); S("s_mul_i32 s50, s52, 36864")
S("s_lshl_b32 s51, s9, 17"); S("s_lshl_b32 s44, s6, 8"); S("s_add_u32 s51, s51, s44")
S("s_lshl_b32 s53, s9, 12")
if opt["ROT1"]=="full":
    S("s_lshl_b32 s54, s5, 1"); S("s_add_u32 s54, s54, s46"); S("s_cmp_ge_u32 s54, 9"); S("s_cselect_b32 s44, 9, 0"); S("s_sub_u32 s54, s54, s44")
elif opt["ROT1"]=="none": S("s_mov_b32 s54, 0")
elif opt["ROT1"]=="half":
    S("s_lshr_b32 s54, s5, 1"); S("s_lshl_b32 s54, s54, 2"); S("s_lshr_b32 s44, s46, 1"); S("s_add_u32 s54, s54, s44")
e.wait_all(lds=True)
def dma(v,sr,so,j,tag):
    if opt["NODMA"]: return
    e.vmem(f"buffer_load_dwordx4 v{v}, {srd(sr)}, s{so} offen offset:{1024*j} lds",tag,r=[v],dma=True)
def setm0(off): S(f"s_add_u32 m0, s53, {off}",m0=True)
def issue(s):
    k=kind(s); tag=("L",s)
    if k=="P1":
        S("s_lshl_b32 s44, s54, 7"); setm0(slot(s)); S("s_add_u32 s44, s44, s50")
        S("s_lshl_b32 s45, s54, 19"); S("s_add_u32 s45, s45, s51")
        for j in range(4): dma(vX[j],X,44,j,tag)
        setm0(slot(s)+16384)
        S("s_add_u32 s54, s54, 1")
        for j in range(4): dma(vQ[j],WQ,45,j,tag)
        S("s_cmp_eq_u32 s54, 9"); S("s_cselect_b32 s54, 0, s54")
    elif k=="K":
        S("s_lshr_b32 s44, s6, s10"); S("s_lshl_b32 s44, s44, 13"); S("s_add_u32 s44, s44, s52"); setm0(slot(s)); S("s_add_u32 s45, s44, 128")
        for j in range(4): dma(vV[j],K,44,j,tag)
        setm0(slot(s)+16384); e.nop(1)
        for j in range(4): dma(vV[j],K,45,j,tag)
    elif k=="W9":
        S("s_lshl_b32 s44, s6, 2"); S("s_add_u32 s44, s44, s9"); S(f"s_mul_i32 s44, s44, {32*1152}"); setm0(slot(s)); S("s_add_u32 s44, s44, 1024")
        for j in range(4): dma(v9[j],WO,44,j,tag)
    else:
        js,half={10:(0,0),11:(0,1),13:(1,0),14:(1,1),15:(2,0),16:(2,1),17:(3,0),18:(3,1)}[s]
        S(f"s_add_u32 s45, s8, {js}"); S("s_and_b32 s45, s45, 3"); S("s_and_b32 s44, s6, 28"); S("s_add_u32 s45, s45, s44")
        S("s_lshr_b32 s44, s45, s10"); S("s_lshl_b32 s44, s44, 13"); S("s_add_u32 s44, s44, s52")
        if half: S("s_add_u32 s44, s44, 128")
        setm0(slot(s))
        S(f"s_mul_i32 s45, s45, {128*1152}"); S("s_add_u32 s45, s45, s55")
        for j in range(4): dma(vV[j],V,44,j,tag)
        setm0(slot(s)+16384)
        if half: S(f"s_add_u32 s45, s45, {64*1152}")
        else: e.nop(1)
        for j in range(4): dma(vO[j],WO,45,j,tag)
issue(0)
decode2()
S("s_lshl_b32 s44, s47, 3"); S("s_add_u32 s44, s44, s7"); S("s_lshl_b32 s44, s44, 7"); S(f"s_add_u32 s44, s44, {CNT}")
Vv(f"v_mov_b32 v{vSA}, s44",w=[vSA]); Vv(f"v_mov_b32 v{vEX}, 16",w=[vEX])
S("s_lshl_b32 s44, s47, 2"); S("s_add_u32 s44, s44, s99"); S("s_lshl_b32 s44, s44, 2"); S("s_lshr_b32 s45, s7, 1"); S("s_add_u32 s44, s44, s45"); S("s_lshl_b32 s44, s44, 7"); S(f"s_add_u32 s44, s44, {CNT+64*128}")
Vv(f"v_writelane_b32 v{vSA}, s44, 1",w=[vSA]); Vv(f"v_writelane_b32 v{vEX}, 8, 1",w=[vEX])
S("s_lshl_b32 s44, s47, 2"); S("s_lshr_b32 s45, s6, 3"); S("s_add_u32 s44, s44, s45"); S("s_lshl_b32 s44, s44, 7"); S(f"s_add_u32 s44, s44, {CNT+192*128}")
Vv(f"v_writelane_b32 v{vSA}, s44, 2",w=[vSA]); Vv(f"v_writelane_b32 v{vEX}, 32, 2",w=[vEX])
S("s_mov_b64 exec, 7")
e.vmem(f"buffer_load_dword v{vSN}, v{vSA}, {srd(WS)}, 0 offen sc1","snap",w=[vSN],r=[vSA])
S("s_mov_b64 exec, -1")
for s in range(1,RING-2): issue(s)
S("s_sub_u32 s10, 1, s4"); S("s_add_u32 s11, s4, 17")
for d,n in ((WO,576*8192),(OUT,512*2304),(DBG,256)): S(f"s_mov_b32 s{d+2}, {n}")
S(f"s_lshl_b32 s{K+2}, 0x200000, s4"); S(f"s_mov_b32 s{V+2}, s{K+2}")
for d in (K,V,WO,OUT,DBG): S(f"s_mov_b32 s{d+3}, 0x00020000")
S("s_movk_i32 s45, 1152")
Vv("v_lshl_or_b32 v6, v28, 8, v32",w=[6],r=[28,32]); Vv("v_xor_b32 v40, 64, v6",w=[40],r=[6])
Vv("v_mad_u32_u24 v14, v30, s45, v35",w=[14],r=[30,35])
Vv("v_and_b32 v38, 1, v30",w=[38],r=[30]); Vv("v_lshlrev_b32 v38, 2, v38",w=[38],r=[38]); Vv("v_xor_b32 v38, v38, v29",w=[38],r=[38,29]); Vv("v_lshlrev_b32 v38, 4, v38",w=[38],r=[38])
Vv("v_mad_u32_u24 v18, v28, s45, v38",w=[18],r=[28,38])
for j in range(1,4):
    Vv(f"v_add_u32 v{vV[j]}, {j*1024}, v{6 if j%2==0 else 40}",w=[vV[j]],r=[6,40])
    Vv(f"v_add_u32 v{vO[j]}, {j*(4608-1024)}, v14",w=[vO[j]],r=[14])
    Vv(f"v_add_u32 v{v9[j]}, {j*(9216-1024)}, v18",w=[v9[j]],r=[18])
Vv("v_lshlrev_b32 v22, 4, v0",w=[22],r=[0]); Vv("v_mov_b32 v23, 0",w=[23])
S("s_lshl_b32 s52, s52, s11")
S(f"s_mul_i32 s55, s9, {16*1152}"); S("s_lshl_b32 s44, s99, 8"); S("s_add_u32 s55, s55, s44")
S("s_lshl_b32 s59, s47, 5")
def stamp(i):
    if STAMP: S(f"s_mem{'real' if STAMP==1 else ''}time s[{58+2*i+2}:{59+2*i+2}]")
def poll(lbl,lane,first_loaded):
    S(f"s_mov_b64 exec, {1<<lane}"); S("s_mov_b32 s45, 0")
    if not first_loaded: S(f"s_branch {lbl}_ld")
    e.label(lbl)
    e.raw(f"v_sub_u32 v41, v{vCU}, v{vSN}"); e.raw(f"v_cmp_ne_u32 vcc, v41, v{vEX}")
    S(f"s_cbranch_vccz {lbl}_done")
    S("s_add_u32 s45, s45, 1"); S("s_cmp_ge_u32 s45, 0x100000"); S(f"s_cbranch_scc1 {lbl}_done")
    S("s_sleep 1")
    e.label(lbl+"_ld")
    e.raw(f"buffer_load_dword v{vCU}, v{vSA}, {srd(WS)}, 0 offen sc1"); e.raw("s_waitcnt vmcnt(0)")
    S(f"s_branch {lbl}")
    e.label(lbl+"_done"); S("s_mov_b64 exec, -1")
for s in range(NST):
    e.need(vm=[("L",s)]+(["snap"] if s==0 else []))
    if s==9 and SYNC:
        e.comment("group-ready check (loader 0): all 32 WGs of the group have taken their snapshots")
        S("s_cmp_lg_u32 s9, 0"); S("s_cbranch_scc1 L_gr_ok")
        S("s_mov_b64 exec, 1"); S("s_mov_b32 s45, 0")
        e.label("L_gr")
        e.raw("v_cmp_ne_u32 vcc, 32, v42"); S("s_cbranch_vccz L_gr_done")
        S("s_add_u32 s45, s45, 1"); S("s_cmp_ge_u32 s45, 0x100000"); S("s_cbranch_scc1 L_gr_done")
        S("s_sleep 2")
        e.raw(f"buffer_load_dword v42, v23, {srd(DBG)}, s59 offen sc1"); e.raw("s_waitcnt vmcnt(0)")
        S("s_branch L_gr")
        e.label("L_gr_done"); S("s_mov_b64 exec, -1")
        e.label("L_gr_ok")
    if s==14 and SYNC:
        S("s_cmp_lg_u32 s9, 0"); S("s_cbranch_scc1 L_p_ok")
        poll("L_pp",0,True)
        e.label("L_p_ok")
    barrier(); stamp(s)
    if s+RING-2==9 and SYNC:
        S("s_cmp_lg_u32 s9, 0"); S("s_cbranch_scc1 L_ngr"); S("s_mov_b64 exec, 1")
        e.vmem(f"buffer_load_dword v42, v23, {srd(DBG)}, s59 offen sc1","f",w=[42],r=[23],count=False)
        S("s_mov_b64 exec, -1"); e.label("L_ngr")
    if s==13 and SYNC:
        S("s_cmp_lg_u32 s9, 0"); S("s_cbranch_scc1 L_npp"); S("s_mov_b64 exec, 1")
        e.vmem(f"buffer_load_dword v{vCU}, v{vSA}, {srd(WS)}, 0 offen sc1","f",w=[vCU],r=[vSA],count=False)
        S("s_mov_b64 exec, -1"); e.label("L_npp")
    if s+RING-2<NST: issue(s+RING-2)

D=48; ACC=96
def red_loads(n,vaddr,sbase,step,dst,flags):
    for i in range(n):
        o=i*step
        S(f"s_add_u32 s44, s{sbase}, {o&~4095}")
        e.vmem(f"buffer_load_dwordx4 v[{dst+4*i}:{dst+4*i+3}], v{vaddr}, {srd(WS)}, s44 offen offset:{o&4095}{flags}",("D",dst,i),w=R(dst+4*i,4),r=[vaddr])
def red_acc(n,dst,acc):
    for i in range(8): Vv(f"v_mov_b32 v{acc+i}, 0",w=[acc+i])
    for i in range(n):
        e.need(vm=[("D",dst,i)])
        d=dst+4*i
        for c in range(4):
            Vv(f"v_dot2c_f32_bf16 v{acc+2*c}, s50, v{d+c}",w=[acc+2*c],r=[acc+2*c,d+c],dot=True)
            Vv(f"v_dot2c_f32_bf16 v{acc+2*c+1}, s51, v{d+c}",w=[acc+2*c+1],r=[acc+2*c+1,d+c],dot=True)
def red9_setup():
    Vv("v_lshrrev_b32 v28, 3, v0",w=[28],r=[0]); Vv("v_and_b32 v29, 7, v0",w=[29],r=[0])
    Vv("v_lshlrev_b32 v43, 9, v28",w=[43],r=[28]); Vv("v_lshl_or_b32 v43, v29, 4, v43",w=[43],r=[29,43])
    S("s_lshl_b32 s44, s6, 14"); S("s_add_u32 s49, s49, s44"); S("s_lshl_b32 s44, s9, 7"); S("s_add_u32 s49, s49, s44")
def red9_finish(dst,acc):
    for i in range(8): Vv(f"v_add_f32_dpp v{acc+i}, v{acc+i}, v{acc+i} row_ror:8 row_mask:0xf bank_mask:0xf",w=[acc+i],r=[acc+i],dpp=True)
    for op in ("v_permlane16_swap_b32","v_permlane32_swap_b32"):
        for i in range(8): Vv(f"v_mov_b32 v{dst+i}, v{acc+i}",w=[dst+i],r=[acc+i])
        for i in range(8): Vv(f"{op} v{acc+i}, v{dst+i}",w=[acc+i,dst+i],r=[acc+i,dst+i],perm=True)
        for i in range(8): Vv(f"v_add_f32 v{acc+i}, v{acc+i}, v{dst+i}",w=[acc+i],r=[acc+i,dst+i])
    for i in range(4): Vv(f"v_cvt_pk_bf16_f32 v{dst+8+i}, v{acc+2*i}, v{acc+2*i+1}",w=[dst+8+i],r=[acc+2*i,acc+2*i+1])
    S("s_lshl_b32 s44, s5, 2"); S("s_lshr_b32 s45, s6, 3"); S("s_add_u32 s44, s44, s45"); S("s_lshl_b32 s44, s44, 2"); S("s_add_u32 s44, s44, s9")
    S(f"s_mul_i32 s44, s44, {8*2304}"); S("s_mul_i32 s45, s4, 1152"); S("s_add_u32 s44, s44, s45"); S("s_and_b32 s45, s6, 7"); S("s_lshl_b32 s45, s45, 4"); S("s_add_u32 s44, s44, s45")
    S("s_movk_i32 s45, 2304")
    Vv("v_mul_u32_u24 v44, s45, v0",w=[44],r=[0])
    S("s_mov_b64 exec, 0xff")
    e.vmem(f"buffer_store_dwordx4 v[{dst+8}:{dst+11}], v44, {srd(OUT)}, s44 offen offset:1024","o9",r=[44],store=R(dst+8,4))
    S("s_mov_b64 exec, -1")
def redm_setup():
    S("s_movk_i32 s45, 2304")
    Vv("v_lshlrev_b32 v22, 4, v0",w=[22],r=[0])
    Vv("v_and_b32 v45, 31, v0",w=[45],r=[0]); Vv("v_mul_u32_u24 v45, s45, v45",w=[45],r=[45]); Vv("v_lshrrev_b32 v46, 5, v0",w=[46],r=[0]); Vv("v_lshl_add_u32 v45, v46, 4, v45",w=[45],r=[45,46])
    S("s_lshl_b32 s44, s7, 15"); S("s_add_u32 s48, s48, s44"); S("s_lshl_b32 s44, s9, 13"); S("s_add_u32 s48, s48, s44")
    S("s_lshl_b32 s44, s5, 2"); S("s_lshr_b32 s45, s7, 1"); S("s_add_u32 s44, s44, s45"); S(f"s_mul_i32 s55, s44, {32*2304}")
    S("s_mul_i32 s45, s4, 1152"); S("s_add_u32 s55, s55, s45"); S("s_lshl_b32 s45, s99, 8"); S("s_add_u32 s55, s55, s45")
    S("s_and_b32 s45, s7, 1"); S("s_lshl_b32 s45, s45, 7"); S("s_add_u32 s55, s55, s45"); S("s_lshl_b32 s45, s9, 5"); S("s_add_u32 s55, s55, s45")
def redm_finish(dst,acc):
    for i in range(4): Vv(f"v_cvt_pk_bf16_f32 v{dst+i}, v{acc+2*i}, v{acc+2*i+1}",w=[dst+i],r=[acc+2*i,acc+2*i+1])
    e.vmem(f"buffer_store_dwordx4 v[{dst}:{dst+3}], v45, {srd(OUT)}, s55 offen","om",r=[45],store=R(dst,4))
if not K2:
    e.comment("---- 9th line reduce, then main reduce")
    S("s_mov_b32 s50, 0x3f80"); S("s_mov_b32 s51, 0x3f800000")
    red9_setup(); redm_setup()
    if SYNC: poll("L_pn",2,False)
    e.reset_haz(); e.vm=[]
    red_loads(4,43,49,4096,D," sc1"); red_acc(4,D,ACC); red9_finish(D,ACC)
    stamp(19)
    if SYNC: poll("L_pf",1,False)
    e.reset_haz(); e.vm=[]
    red_loads(8,22,48,1024,D+16," sc1"); red_acc(8,D+16,ACC); redm_finish(D,ACC)
else: stamp(19)
if STAMP:
    S("s_memrealtime s[100:101]"); e.wait_all(lds=True,vm=True)
    S("s_cmp_lg_u32 s9, 0"); S("s_cbranch_scc1 L_end")
    Vv("v_writelane_b32 v1, s56, 0",w=[1]); Vv("v_writelane_b32 v1, s57, 1",w=[1])
    for i in range(40): Vv(f"v_writelane_b32 v1, s{60+i}, {2+i}",w=[1])
    Vv("v_writelane_b32 v1, s100, 42",w=[1]); Vv("v_writelane_b32 v1, s101, 43",w=[1])
    Vv(f"v_writelane_b32 v1, s45, 44",w=[1]); Vv("v_lshlrev_b32 v23, 2, v0",w=[23],r=[0])
    S("s_lshl_b32 s44, s2, 8"); S(f"s_add_u32 s44, s44, {STB}"); S("s_mov_b32 exec_lo, -1"); S("s_mov_b32 exec_hi, 0xffff")
    e.vmem(f"buffer_store_dword v1, v23, {srd(WS)}, s44 offen","x",r=[1,23])
e.raw("s_endpgm")

e.label("L_compute"); e.reset_haz(); e.lds=[]; e.vm=[]
aR=R(2,4); aT=R(6,4); aT9=R(10,2); vL16=12; vO9=13; vZ=14; vI=15
T=16; Rdb=32; Rbig=40; accG=72; outA=136; pk=200; Pown=232; o9p=240
if opt["PRIO"]: S("s_setprio 2")
decode2()
S(f"s_mov_b32 s{DBG+2}, 256"); S(f"s_mov_b32 s{DBG+3}, 0x00020000")
Vv("v_and_b32 v14, 31, v0",w=[14],r=[0]); Vv("v_lshrrev_b32 v15, 5, v0",w=[15],r=[0])
Vv("v_lshlrev_b32 v12, 4, v0",w=[12],r=[0]); Vv("v_lshlrev_b32 v13, 4, v14",w=[13],r=[14])
Vv("v_lshl_or_b32 v13, v15, 14, v13",w=[13],r=[13,15])
Vv("v_bfe_u32 v16, v0, 1, 3",w=[16],r=[0]); Vv("v_xor_b32 v16, v16, v15",w=[16],r=[16,15]); Vv("v_lshlrev_b32 v16, 4, v16",w=[16],r=[16])
Vv("v_lshl_or_b32 v16, v14, 7, v16",w=[16],r=[16,14])
S("s_lshl_b32 s44, s9, 12")
Vv("v_add_u32 v2, s44, v16",w=[2],r=[16])
for ks in range(1,4): Vv(f"v_xor_b32 v{2+ks}, {32*ks}, v2",w=[2+ks],r=[2])
Vv("v_bfe_u32 v16, v0, 2, 2",w=[16],r=[0])
Vv("v_and_b32 v17, 1, v0",w=[17],r=[0]); Vv("v_bfe_u32 v18, v0, 1, 1",w=[18],r=[0])
Vv("v_lshlrev_b32 v17, 4, v17",w=[17],r=[17]); Vv("v_lshl_or_b32 v17, v18, 3, v17",w=[17],r=[17,18])
Vv("v_bfe_u32 v18, v0, 4, 1",w=[18],r=[0]); Vv("v_lshl_or_b32 v17, v18, 5, v17",w=[17],r=[17,18])
Vv("v_lshl_or_b32 v18, v15, 3, v16",w=[18],r=[15,16])
Vv("v_lshl_or_b32 v19, v18, 8, v17",w=[19],r=[18,17]); Vv("v_lshl_or_b32 v19, v16, 6, v19",w=[19],r=[16,19])
Vv("v_add_u32 v6, 0x4000, v19",w=[6],r=[19])
for t in range(1,4): Vv(f"v_xor_b32 v{6+t}, {64*t}, v6",w=[6+t],r=[6])
Vv("v_lshl_or_b32 v19, v18, 7, v17",w=[19],r=[18,17]); Vv("v_lshrrev_b32 v16, 1, v16",w=[16],r=[16]); Vv("v_lshl_or_b32 v19, v16, 6, v19",w=[19],r=[16,19])
Vv(f"v_add_u32 v10, {slot(12)}, v19",w=[10],r=[19]); Vv("v_xor_b32 v11, 64, v10",w=[11],r=[10])
Vv("v_mov_b32 v14, 0",w=[14]); Vv("v_mov_b32 v15, 1",w=[15])
S("s_lshl_b32 s50, s47, 2"); S("s_add_u32 s50, s50, s9")
S("s_lshl_b32 s55, s50, 7"); S(f"s_add_u32 s55, s55, {CNT+192*128}")
S("s_lshl_b32 s50, s50, 16")
S("s_lshl_b32 s44, s9, 16"); S("s_add_u32 s51, s48, s44"); S("s_lshl_b32 s44, s7, 10"); S("s_add_u32 s51, s51, s44")
S("s_lshl_b32 s44, s9, 17"); S("s_add_u32 s52, s49, s44"); S("s_lshl_b32 s44, s6, 9"); S("s_add_u32 s52, s52, s44")
cval=struct.unpack("<I",struct.pack("<f",(128**-0.5)*math.log2(math.e)))[0]
S(f"s_mov_b32 s53, {cval:#x}")
S("s_lshl_b32 s54, s47, 3"); S("s_add_u32 s54, s54, s7"); S("s_lshl_b32 s54, s54, 7"); S(f"s_add_u32 s54, s54, {CNT}")
S("s_lshl_b32 s58, s47, 2"); S("s_add_u32 s58, s58, s99"); S("s_lshl_b32 s58, s58, 2"); S("s_add_u32 s58, s58, s9"); S("s_lshl_b32 s58, s58, 7"); S(f"s_add_u32 s58, s58, {CNT+64*128}")
S("s_lshl_b32 s59, s47, 5")
e.wait_all(lds=True)
def cadd(sr,so,tag="cnt",count=True):
    S("s_mov_b64 exec, 1")
    e.vmem(f"buffer_atomic_add v{vI}, v{vZ}, {srd(sr)}, s{so} offen sc1",tag,r=[vI,vZ],count=count)
    S("s_mov_b64 exec, -1")
cur=[0]
def advance(s):
    d=slot(s)-cur[0]; cur[0]=slot(s)
    for r in aR+aT:
        if d>=0: Vv(f"v_add_u32 v{r}, {d}, v{r}",w=[r],r=[r])
        else: Vv(f"v_subrev_u32 v{r}, {-d}, v{r}",w=[r],r=[r])
def Rreg(s,ks):
    if s in (10,11): return Rbig+16*(s-10)+4*ks
    return Rdb+4*(ks&1)
def rd_R(dst,ks,off,tag):
    e.ds(f"ds_read_b128 v[{dst}:{dst+3}], v{aR[ks]} offset:{off}",tag,w=R(dst,4),r=[aR[ks]])
def rd_T(dst,a,off0,off1,tag):
    e.ds(f"ds_read_b64_tr_b16 v[{dst}:{dst+1}], v{a} offset:{off0}",tag,w=R(dst,2),r=[a])
    e.ds(f"ds_read_b64_tr_b16 v[{dst+2}:{dst+3}], v{a} offset:{off1}",tag,w=R(dst+2,2),r=[a])
def reads_for(s,ks):
    k=kind(s)
    if k in("P1","P2"):
        return (lambda: rd_R(Rreg(s,ks),ks,0,("R",s,ks)),
                [(lambda t=t: rd_T(T+4*t,aT[t],ks*4096,ks*4096+1024,("T",s,ks,t))) for t in range(4)])
    if k=="K":
        def two(t):
            for kk in (2*t,2*t+1): rd_R(Rbig+4*kk,kk%4,(kk//4)*16384,("K",kk))
        return (lambda: None,[(lambda t=t: two(t)) for t in range(4)])
    return (lambda: None,
            [(lambda t=t: rd_T(T+4*t,aT9[t%2],(2*ks+t//2)*2048,(2*ks+t//2)*2048+512,("T",s,ks,t))) for t in range(4)])
def cvt_tile(src,dst):
    for i in range(8):
        Vv(f"v_cvt_pk_bf16_f32 v{dst+i}, v{src+2*i}, v{src+2*i+1}",w=[dst+i],r=[src+2*i,src+2*i+1])
def stage(s,pre={},post={},atbar=None,nxt=True):
    k=kind(s)
    for ks in range(4):
        if ks==3:
            if nxt:
                advance(s+1)
                if atbar and atbar[0]: atbar[0]()
                barrier()
                if atbar and atbar[1]: atbar[1]()
                nr,nt=reads_for(s+1,0)
            else: nr,nt=(lambda:None),[(lambda:None)]*4
        else: nr,nt=reads_for(s,ks+1)
        nr()
        for t in range(4):
            for f in pre.get((ks,t),[]): f()
            e.need(lds=[("T",s,ks,t),("R",s,ks)])
            if k=="P1":   e.mfma(accG+16*t,T+4*t,Rreg(s,ks),None if (s==0 and ks==0) else accG+16*t)
            elif k=="P2":
                first=(ks==0 and (s in (10,13,15,17)))
                e.mfma(accG+16*t,Rreg(s,ks),T+4*t,None if first else accG+16*t)
            else:
                kk=2*ks+t//2; d=accG+16*(t%2)
                e.mfma(d,Rbig+4*kk,T+4*t,None if kk==0 else d)
            nt[t]()
            for f in post.get((ks,t),[]): f()
def PM(t,q,P,first=False,dst=None,vm=None):
    def f():
        if vm: e.need(vm=[vm])
        d=(outA+16*t) if dst is None else dst
        e.mfma(d,pk+8*t+4*q,P+4*q,None if (first and q==0) else d)
    return f
barrier()
nr,nt=reads_for(0,0); nr()
for t in range(4): nt[t]()
def grp_add():
    S("s_cmp_lg_u32 s9, 0"); S("s_cbranch_scc1 L_nga"); cadd(DBG,59,count=False); e.label("L_nga")
for s in range(9): stage(s,post={(0,1):[grp_add]} if (s==0 and SYNC) else {})
Sx=outA; tm=outA+16; tm2=outA+17; E=outA+32
for t in range(4):
    cvt_tile(accG+16*t,pk+8*t)
    for kk in (2*t,2*t+1):
        e.need(lds=[("K",kk)])
        e.mfma(Sx,Rbig+4*kk,pk+4*kk,None if kk==0 else Sx)
Vv(f"v_max3_f32 v{tm}, v{Sx}, v{Sx+1}, v{Sx+2}",w=[tm],r=[Sx,Sx+1,Sx+2])
Vv(f"v_max3_f32 v{tm2}, v{Sx+3}, v{Sx+4}, v{Sx+5}",w=[tm2],r=[Sx+3,Sx+4,Sx+5])
for i,d in ((6,tm),(8,tm2),(10,tm),(12,tm2)):
    Vv(f"v_max3_f32 v{d}, v{d}, v{Sx+i}, v{Sx+i+1}",w=[d],r=[d,Sx+i,Sx+i+1])
Vv(f"v_max3_f32 v{tm}, v{tm}, v{Sx+14}, v{Sx+15}",w=[tm],r=[tm,Sx+14,Sx+15])
Vv(f"v_max_f32 v{tm}, v{tm}, v{tm2}",w=[tm],r=[tm,tm2])
Vv(f"v_mov_b32 v{tm2}, v{tm}",w=[tm2],r=[tm])
Vv(f"v_permlane32_swap_b32 v{tm}, v{tm2}",w=[tm,tm2],r=[tm,tm2],perm=True)
Vv(f"v_max_f32 v{tm}, v{tm}, v{tm2}",w=[tm],r=[tm,tm2])
Vv(f"v_mul_f32 v{tm}, s53, v{tm}",w=[tm],r=[tm])
for i in range(16): Vv(f"v_fma_f32 v{E+i}, v{Sx+i}, s53, -v{tm}",w=[E+i],r=[Sx+i,tm])
for i in range(16): Vv(f"v_exp_f32 v{E+i}, v{E+i}",w=[E+i],r=[E+i],trans=True)
sm=outA+18
for i in range(4): Vv(f"v_add_f32 v{sm+i}, v{E+i}, v{E+4+i}",w=[sm+i],r=[E+i,E+4+i])
for j in (8,12):
    for i in range(4): Vv(f"v_add_f32 v{sm+i}, v{sm+i}, v{E+j+i}",w=[sm+i],r=[sm+i,E+j+i])
Vv(f"v_add_f32 v{sm}, v{sm}, v{sm+1}",w=[sm],r=[sm,sm+1]); Vv(f"v_add_f32 v{sm+2}, v{sm+2}, v{sm+3}",w=[sm+2],r=[sm+2,sm+3])
Vv(f"v_add_f32 v{sm}, v{sm}, v{sm+2}",w=[sm],r=[sm,sm+2])
Vv(f"v_mov_b32 v{tm2}, v{sm}",w=[tm2],r=[sm])
Vv(f"v_permlane32_swap_b32 v{sm}, v{tm2}",w=[sm,tm2],r=[sm,tm2],perm=True)
Vv(f"v_add_f32 v{sm}, v{sm}, v{tm2}",w=[sm],r=[sm,tm2])
Vv(f"v_rcp_f32 v{sm}, v{sm}",w=[sm],r=[sm],trans=True)
S("s_lshl_b32 s44, s6, 11"); S("s_add_u32 s44, s44, s50")
for i in range(16): Vv(f"v_mul_f32 v{E+i}, v{E+i}, v{sm}",w=[E+i],r=[E+i,sm])
cvt_tile(E,Pown)
for q in range(2):
    e.vmem(f"buffer_store_dwordx4 v[{Pown+4*q}:{Pown+4*q+3}], v{vL16}, {srd(WS)}, s44 offen offset:{1024*q} sc1","Pst",r=[vL16],store=R(Pown+4*q,4))
if STAMP: S("s_memrealtime s[60:61]"); e.wait_all(lds=True)
advance(10); barrier()
nr,nt=reads_for(10,0); nr()
for t in range(4): nt[t]()
def p_add():
    e.need(vm=["Pst"])
    if SYNC: cadd(WS,54)
stage(10,atbar=(p_add,None))
stage(11)
C=lambda t: (lambda: cvt_tile(accG+16*t,pk+8*t))
stage(12,pre={(0,0):[C(0)],(0,1):[C(1)]},
      post={(0,2):[C(2)],(0,3):[C(3)],(1,0):[PM(0,0,Pown,True),PM(0,1,Pown)],(1,2):[PM(1,0,Pown,True),PM(1,1,Pown)],
            (2,0):[PM(2,0,Pown,True),PM(2,1,Pown)],(2,2):[PM(3,0,Pown,True),PM(3,1,Pown)]})
def pub9(t9):
    def f():
        cvt_tile(Rbig+16*t9,o9p+8*t9)
        for q in range(2):
            S(f"s_add_u32 s44, s52, {(4*t9+2*q)*16384}")
            r0=o9p+8*t9+4*q
            e.vmem(f"buffer_store_dwordx4 v[{r0}:{r0+3}], v{vO9}, {srd(WS)}, s44 offen{PST}","O9st",r=[vO9],store=R(r0,4))
    return f
def ploads():
    for j in range(1,4):
        S(f"s_add_u32 s44, s8, {j}"); S("s_and_b32 s44, s44, 3"); S("s_and_b32 s45, s6, 28"); S("s_add_u32 s44, s44, s45")
        S("s_lshl_b32 s44, s44, 11"); S("s_add_u32 s44, s44, s50")
        for q in range(2):
            r0=Rbig+8*j+4*q
            e.vmem(f"buffer_load_dwordx4 v[{r0}:{r0+3}], v{vL16}, {srd(WS)}, s44 offen offset:{1024*q} sc1",("P",j),w=R(r0,4),r=[vL16])
stage(13,pre={(0,0):[C(0)],(0,1):[C(1)]},
      post={(0,3):[PM(0,0,Pown,True,dst=Rbig),PM(0,1,Pown,dst=Rbig)],(1,0):[PM(1,0,Pown,True,dst=Rbig+16),PM(1,1,Pown,dst=Rbig+16)],
            (2,0):[pub9(0)],(2,2):[pub9(1)]},
      atbar=(None,ploads))
stage(14)
allC={(0,t):[C(t)] for t in range(4)}
def pms(j,ks0):
    P=Rbig+8*j
    return {(ks0,0):[PM(0,0,P,vm=("P",j)),PM(0,1,P)],(ks0,2):[PM(1,0,P),PM(1,1,P)],(ks0+1,0):[PM(2,0,P),PM(2,1,P)],(ks0+1,2):[PM(3,0,P),PM(3,1,P)]}
def n_add():
    if SYNC and not K2: e.need(vm=["O9st"]); cadd(WS,55)
stage(15,pre=allC,post={(2,1):[n_add]})
stage(16,post=pms(1,1))
stage(17,pre=allC,post=pms(2,2))
stage(18,nxt=False)
P3=Rbig+24
def fin(t):
    cvt_tile(outA+16*t,accG+16*t)
    for q in range(2):
        S(f"s_add_u32 s44, s51, {(2*t+q)*8192}")
        r0=accG+16*t+4*q
        e.vmem(f"buffer_store_dwordx4 v[{r0}:{r0+3}], v{vL16}, {srd(WS)}, s44 offen{PST}","Mst",r=[vL16],store=R(r0,4))
for t in range(4):
    C(t)(); PM(t,0,P3,vm=("P",3))(); PM(t,1,P3)()
    if t>=2: fin(t-2)
fin(2); fin(3)
if STAMP: S("s_memrealtime s[62:63]")
if not K2:
    e.wait_all(vm=True)
    if SYNC: cadd(WS,58)
if STAMP:
    e.wait_all(vm=True); S("s_memrealtime s[64:65]"); e.wait_all(lds=True)
    S("s_cmp_lg_u32 s9, 0"); S("s_cbranch_scc1 L_end")
    Vv("v_writelane_b32 v1, s56, 0",w=[1]); Vv("v_writelane_b32 v1, s57, 1",w=[1])
    for i in range(6): Vv(f"v_writelane_b32 v1, s{60+i}, {2+i}",w=[1])
    Vv("v_lshlrev_b32 v2, 2, v0",w=[2],r=[0])
    S("s_lshl_b32 s44, s2, 8"); S(f"s_add_u32 s44, s44, {STB+192}"); S("s_mov_b64 exec, 0xff")
    e.vmem(f"buffer_store_dword v1, v2, {srd(WS)}, s44 offen","x",r=[1,2])
e.label("L_end")
e.raw("s_endpgm")
def kd(n,vg):
    return f'''.amdhsa_kernel {n}
  .amdhsa_next_free_vgpr {vg}
  .amdhsa_next_free_sgpr 102
  .amdhsa_accum_offset {vg}
  .amdhsa_group_segment_fixed_size 0
  .amdhsa_kernarg_size 104
  .amdhsa_user_sgpr_count 2
  .amdhsa_user_sgpr_kernarg_segment_ptr 1
  .amdhsa_system_sgpr_workgroup_id_x 1
  .amdhsa_float_denorm_mode_32 3
.end_amdhsa_kernel
'''
if K2:
    e.lines.append(".globl red_kernel\n.p2align 8\n.type red_kernel,@function\nred_kernel:")
    e.reset_haz(); e.vm=[]; e.lds=[]
    S("s_cmp_ge_u32 s2, 256"); S("s_cbranch_scc1 L_rend")
    for d,off in ((WS,96),(OUT,80)): S(f"s_load_dwordx2 s[{d}:{d+1}], s[0:1], {off}")
    S("s_bfe_u32 s4, s2, 0x10002")
    Vv("v_lshrrev_b32 v1, 6, v0",w=[1],r=[0])
    decode(); decode2()
    for d,n in ((OUT,512*2304),(WS,0x10000000)): S(f"s_mov_b32 s{d+2}, {n}"); S(f"s_mov_b32 s{d+3}, 0x00020000")
    S("s_mov_b32 s50, 0x3f80"); S("s_mov_b32 s51, 0x3f800000")
    S("s_cmp_lt_u32 s3, 4"); S("s_cbranch_scc1 L_r9")
    redm_setup(); e.wait_all(lds=True)
    red_loads(8,22,48,1024,D+16,""); red_acc(8,D+16,ACC); redm_finish(D,ACC)
    e.raw("s_endpgm")
    e.label("L_r9"); e.reset_haz(); e.vm=[]
    red9_setup(); e.wait_all(lds=True)
    red_loads(4,43,49,4096,D,""); red_acc(4,D,ACC); red9_finish(D,ACC)
    e.label("L_rend"); e.raw("s_endpgm")
bot='\n.section .rodata,"a"\n.p2align 6\n'+kd(KN,256)
if K2: bot+=".p2align 6\n"+kd("red_kernel",104)
sys.stdout.write(top+e.text()+bot)
sys.stderr.write(f"nops inserted: {e.nops}\n")
```

```python
import sys, math, struct
from emit import Emit, R
NAME="concat_heads__gqa_block_cached__mha_block_cached__near_ridge"
opt=dict(RING=4, ROT1="full", STAMP=0, PRIO=0, NODMA=0, NOCOMP=0, NOSYNC=0, FIN="in", ST="sc1", DBGT=0)
for a in sys.argv[1:]:
    k,v=a.split("="); opt[k]=int(v) if v.lstrip("-").isdigit() else v
RING=opt["RING"]; STAMP=opt["STAMP"]; K2=opt["FIN"]=="k2"; SYNC=not opt["NOSYNC"]
PST="" if K2 and opt["ST"]=="plain" else " sc1"
NST=19
INB=0x400000; IN9=0xC00000; CNT=0x200000; STB=0xC800000
SLOT=32768
def slot(s): return (s%RING)*SLOT
X,K,V,WQ,WO,OUT,DBG,WS=12,16,20,24,28,32,36,40
def srd(b): return f"s[{b}:{b+3}]"
e=Emit()
if opt["NOCOMP"]:
    e.mfma=lambda *a,**k: None
    e.ds=lambda *a,**k: None
S=e.salu; Vv=e.valu
KN=NAME+"_kernel"
hdr=open("cdna_kernels/"+NAME+".s.ref").read().split("; Override launch")[0]
if K2: top=hdr+f"; @launch kernel={KN} grid=(256,1,1) block=(512,1,1) lds={RING*SLOT}\n; @launch kernel=red_kernel grid=(256,1,1) block=(512,1,1) lds=0\n"
else: top=hdr+f"; @launch grid=(256,1,1) block=(512,1,1) lds={RING*SLOT}\n"
top+=f'.amdgcn_target "amdgcn-amd-amdhsa--gfx950"\n.text\n.globl {KN}\n.p2align 8\n.type {KN},@function\n{KN}:\n'
def barrier(): e.raw("s_barrier")
def kind(s):
    if s<9: return "P1"
    if s==9: return "K"
    if s==12: return "W9"
    return "P2"

def decode(full=True):
    S("s_bfe_u32 s5, s2, 0x20003"); S("s_lshr_b32 s46, s2, 5")
    S("s_and_b32 s6, s2, 3"); S("s_lshl_b32 s6, s6, 3"); S("s_add_u32 s6, s6, s46")
    Vv("v_readfirstlane_b32 s3, v1",r=[1],rfl=True,swr=["s3"])
    Vv("v_and_b32 v0, 63, v0",w=[0],r=[0])
    S("s_and_b32 s9, s3, 3")
def decode2():
    S("s_lshr_b32 s7, s6, 2"); S("s_and_b32 s8, s6, 3")
    S("s_lshl_b32 s47, s4, 2"); S("s_add_u32 s47, s47, s5")
    S("s_add_u32 s99, s8, s5"); S("s_and_b32 s99, s99, 3")
    S("s_lshl_b32 s48, s47, 2"); S("s_add_u32 s48, s48, s99"); S("s_lshl_b32 s48, s48, 18"); S(f"s_add_u32 s48, s48, {INB}")
    S("s_lshl_b32 s49, s47, 19"); S(f"s_add_u32 s49, s49, {IN9}")
S("s_cmp_ge_u32 s2, 256"); S("s_cbranch_scc1 L_end")
if STAMP or opt["DBGT"]: S("s_memrealtime s[56:57]")
S("s_bfe_u32 s4, s2, 0x10002")
S("s_mul_i32 s44, s4, 40"); S("s_add_u32 s44, s0, s44"); S("s_addc_u32 s45, s1, 0")
for d,off in ((X,0),(WQ,24),(K,8),(V,16),(WO,32)): S(f"s_load_dwordx2 s[{d}:{d+1}], s[44:45], {off}")
for d,off in ((WS,96),(OUT,80),(DBG,88)): S(f"s_load_dwordx2 s[{d}:{d+1}], s[0:1], {off}")
Vv("v_lshrrev_b32 v1, 6, v0",w=[1],r=[0])
decode()
for d,n in ((X,512*1152),(WQ,576*8192),(WS,0x2000000)): S(f"s_mov_b32 s{d+2}, {n}"); S(f"s_mov_b32 s{d+3}, 0x00020000")
S("s_cmp_lt_u32 s3, 4"); S("s_cbranch_scc1 L_compute")

vX,vV,vQ,vO,v9=R(2,4),R(6,4),R(10,4),R(14,4),R(18,4)
vL16=22; vL4=23; vSA=24; vSN=25; vCU=26; vEX=27
Vv("v_lshrrev_b32 v28, 3, v0",w=[28],r=[0]); Vv("v_and_b32 v29, 7, v0",w=[29],r=[0])
Vv("v_lshrrev_b32 v30, 4, v0",w=[30],r=[0]); Vv("v_and_b32 v31, 15, v0",w=[31],r=[0])
S("s_movk_i32 s45, 1152")
Vv("v_xor_b32 v32, v29, v30",w=[32],r=[29,30]); Vv("v_lshlrev_b32 v32, 4, v32",w=[32],r=[32])
Vv("v_mad_u32_u24 v2, v28, s45, v32",w=[2],r=[28,32])
Vv("v_lshlrev_b32 v35, 2, v30",w=[35],r=[30]); Vv("v_xor_b32 v35, v35, v31",w=[35],r=[35,31]); Vv("v_lshlrev_b32 v35, 4, v35",w=[35],r=[35])
Vv("v_lshl_or_b32 v10, v30, 13, v35",w=[10],r=[30,35])
Vv("v_xor_b32 v39, 64, v2",w=[39],r=[2])
for j in range(1,4):
    Vv(f"v_add_u32 v{vX[j]}, {j*(9216-1024)}, v{2 if j%2==0 else 39}",w=[vX[j]],r=[2,39])
    Vv(f"v_add_u32 v{vQ[j]}, {j*(32768-1024)}, v10",w=[vQ[j]],r=[10])
S("s_lshl_b32 s52, s5, 2"); S("s_add_u32 s52, s52, s9"); S("s_mul_i32 s50, s52, 36864")
S("s_lshl_b32 s51, s9, 17"); S("s_lshl_b32 s44, s6, 8"); S("s_add_u32 s51, s51, s44")
S("s_lshl_b32 s53, s9, 12")
if opt["ROT1"]=="full":
    S("s_lshl_b32 s54, s5, 1"); S("s_add_u32 s54, s54, s46"); S("s_cmp_ge_u32 s54, 9"); S("s_cselect_b32 s44, 9, 0"); S("s_sub_u32 s54, s54, s44")
elif opt["ROT1"]=="none": S("s_mov_b32 s54, 0")
elif opt["ROT1"]=="half":
    S("s_lshr_b32 s54, s5, 1"); S("s_lshl_b32 s54, s54, 2"); S("s_lshr_b32 s44, s46, 1"); S("s_add_u32 s54, s54, s44")
e.wait_all(lds=True)
def dma(v,sr,so,j,tag):
    if opt["NODMA"]: return
    e.vmem(f"buffer_load_dwordx4 v{v}, {srd(sr)}, s{so} offen offset:{1024*j} lds",tag,r=[v],dma=True)
def setm0(off): S(f"s_add_u32 m0, s53, {off}",m0=True)
def issue(s):
    k=kind(s); tag=("L",s)
    if k=="P1":
        S("s_lshl_b32 s44, s54, 7"); setm0(slot(s)); S("s_add_u32 s44, s44, s50")
        S("s_lshl_b32 s45, s54, 19"); S("s_add_u32 s45, s45, s51")
        for j in range(4): dma(vX[j],X,44,j,tag)
        setm0(slot(s)+16384)
        S("s_add_u32 s54, s54, 1")
        for j in range(4): dma(vQ[j],WQ,45,j,tag)
        S("s_cmp_eq_u32 s54, 9"); S("s_cselect_b32 s54, 0, s54")
    elif k=="K":
        S("s_lshr_b32 s44, s6, s10"); S("s_lshl_b32 s44, s44, 13"); S("s_add_u32 s44, s44, s52"); setm0(slot(s)); S("s_add_u32 s45, s44, 128")
        for j in range(4): dma(vV[j],K,44,j,tag)
        setm0(slot(s)+16384); e.nop(1)
        for j in range(4): dma(vV[j],K,45,j,tag)
    elif k=="W9":
        S("s_lshl_b32 s44, s6, 2"); S("s_add_u32 s44, s44, s9"); S(f"s_mul_i32 s44, s44, {32*1152}"); setm0(slot(s)); S("s_add_u32 s44, s44, 1024")
        for j in range(4): dma(v9[j],WO,44,j,tag)
    else:
        js,half={10:(0,0),11:(0,1),13:(1,0),14:(1,1),15:(2,0),16:(2,1),17:(3,0),18:(3,1)}[s]
        S(f"s_add_u32 s45, s8, {js}"); S("s_and_b32 s45, s45, 3"); S("s_and_b32 s44, s6, 28"); S("s_add_u32 s45, s45, s44")
        S("s_lshr_b32 s44, s45, s10"); S("s_lshl_b32 s44, s44, 13"); S("s_add_u32 s44, s44, s52")
        if half: S("s_add_u32 s44, s44, 128")
        setm0(slot(s))
        S(f"s_mul_i32 s45, s45, {128*1152}"); S("s_add_u32 s45, s45, s55")
        for j in range(4): dma(vV[j],V,44,j,tag)
        setm0(slot(s)+16384)
        if half: S(f"s_add_u32 s45, s45, {64*1152}")
        else: e.nop(1)
        for j in range(4): dma(vO[j],WO,45,j,tag)
issue(0)
decode2()
S("s_lshl_b32 s44, s47, 3"); S("s_add_u32 s44, s44, s7"); S("s_lshl_b32 s44, s44, 7"); S(f"s_add_u32 s44, s44, {CNT}")
Vv(f"v_mov_b32 v{vSA}, s44",w=[vSA]); Vv(f"v_mov_b32 v{vEX}, 16",w=[vEX])
S("s_lshl_b32 s44, s47, 2"); S("s_add_u32 s44, s44, s99"); S("s_lshl_b32 s44, s44, 2"); S("s_lshr_b32 s45, s7, 1"); S("s_add_u32 s44, s44, s45"); S("s_lshl_b32 s44, s44, 7"); S(f"s_add_u32 s44, s44, {CNT+64*128}")
Vv(f"v_writelane_b32 v{vSA}, s44, 1",w=[vSA]); Vv(f"v_writelane_b32 v{vEX}, 8, 1",w=[vEX])
S("s_lshl_b32 s44, s47, 2"); S("s_lshr_b32 s45, s6, 3"); S("s_add_u32 s44, s44, s45"); S("s_lshl_b32 s44, s44, 7"); S(f"s_add_u32 s44, s44, {CNT+192*128}")
Vv(f"v_writelane_b32 v{vSA}, s44, 2",w=[vSA]); Vv(f"v_writelane_b32 v{vEX}, 32, 2",w=[vEX])
S("s_mov_b64 exec, 7")
e.vmem(f"buffer_load_dword v{vSN}, v{vSA}, {srd(WS)}, 0 offen sc1","snap",w=[vSN],r=[vSA])
S("s_mov_b64 exec, -1")
for s in range(1,RING-2): issue(s)
S("s_sub_u32 s10, 1, s4"); S("s_add_u32 s11, s4, 17")
for d,n in ((WO,576*8192),(OUT,512*2304),(DBG,256)): S(f"s_mov_b32 s{d+2}, {n}")
S(f"s_lshl_b32 s{K+2}, 0x200000, s4"); S(f"s_mov_b32 s{V+2}, s{K+2}")
for d in (K,V,WO,OUT,DBG): S(f"s_mov_b32 s{d+3}, 0x00020000")
S("s_movk_i32 s45, 1152")
Vv("v_lshl_or_b32 v6, v28, 8, v32",w=[6],r=[28,32]); Vv("v_xor_b32 v40, 64, v6",w=[40],r=[6])
Vv("v_mad_u32_u24 v14, v30, s45, v35",w=[14],r=[30,35])
Vv("v_and_b32 v38, 1, v30",w=[38],r=[30]); Vv("v_lshlrev_b32 v38, 2, v38",w=[38],r=[38]); Vv("v_xor_b32 v38, v38, v29",w=[38],r=[38,29]); Vv("v_lshlrev_b32 v38, 4, v38",w=[38],r=[38])
Vv("v_mad_u32_u24 v18, v28, s45, v38",w=[18],r=[28,38])
for j in range(1,4):
    Vv(f"v_add_u32 v{vV[j]}, {j*1024}, v{6 if j%2==0 else 40}",w=[vV[j]],r=[6,40])
    Vv(f"v_add_u32 v{vO[j]}, {j*(4608-1024)}, v14",w=[vO[j]],r=[14])
    Vv(f"v_add_u32 v{v9[j]}, {j*(9216-1024)}, v18",w=[v9[j]],r=[18])
Vv("v_lshlrev_b32 v22, 4, v0",w=[22],r=[0]); Vv("v_mov_b32 v23, 0",w=[23])
S("s_lshl_b32 s52, s52, s11")
S(f"s_mul_i32 s55, s9, {16*1152}"); S("s_lshl_b32 s44, s99, 8"); S("s_add_u32 s55, s55, s44")
S("s_lshl_b32 s59, s47, 5")
def stamp(i):
    if STAMP: S(f"s_mem{'real' if STAMP==1 else ''}time s[{58+2*i+2}:{59+2*i+2}]")
def poll(lbl,lane,first_loaded):
    S(f"s_mov_b64 exec, {1<<lane}"); S("s_mov_b32 s45, 0")
    if not first_loaded: S(f"s_branch {lbl}_ld")
    e.label(lbl)
    e.raw(f"v_sub_u32 v41, v{vCU}, v{vSN}"); e.raw(f"v_cmp_ne_u32 vcc, v41, v{vEX}")
    S(f"s_cbranch_vccz {lbl}_done")
    S("s_add_u32 s45, s45, 1"); S("s_cmp_ge_u32 s45, 0x20000"); S(f"s_cbranch_scc1 {lbl}_done")
    S("s_sleep 1")
    e.label(lbl+"_ld")
    e.raw(f"buffer_load_dword v{vCU}, v{vSA}, {srd(WS)}, 0 offen sc1"); e.raw("s_waitcnt vmcnt(0)")
    S(f"s_branch {lbl}")
    e.label(lbl+"_done"); S("s_mov_b64 exec, -1")
for s in range(NST):
    e.need(vm=[("L",s)]+(["snap"] if s==0 else []))
    if s==9 and SYNC:
        e.comment("group-ready check (loader 0): all 32 WGs of the group have taken their snapshots")
        S("s_cmp_lg_u32 s9, 0"); S("s_cbranch_scc1 L_gr_ok")
        S("s_mov_b64 exec, 1"); S("s_mov_b32 s45, 0")
        e.label("L_gr")
        e.raw("v_cmp_gt_u32 vcc, 32, v42"); S("s_cbranch_vccz L_gr_done")
        S("s_add_u32 s45, s45, 1"); S("s_cmp_ge_u32 s45, 0x20000"); S("s_cbranch_scc1 L_gr_done")
        S("s_sleep 2")
        e.raw(f"buffer_load_dword v42, v23, {srd(DBG)}, s59 offen sc1"); e.raw("s_waitcnt vmcnt(0)")
        S("s_branch L_gr")
        e.label("L_gr_done"); S("s_mov_b64 exec, -1")
        e.label("L_gr_ok")
    if s==14 and SYNC:
        S("s_cmp_lg_u32 s9, 0"); S("s_cbranch_scc1 L_p_ok")
        poll("L_pp",0,True)
        e.label("L_p_ok")
    barrier(); stamp(s)
    if s+RING-2==9 and SYNC:
        S("s_cmp_lg_u32 s9, 0"); S("s_cbranch_scc1 L_ngr"); S("s_mov_b64 exec, 1")
        e.vmem(f"buffer_load_dword v42, v23, {srd(DBG)}, s59 offen sc1","f",w=[42],r=[23],count=False)
        S("s_mov_b64 exec, -1"); e.label("L_ngr")
    if s==13 and SYNC:
        S("s_cmp_lg_u32 s9, 0"); S("s_cbranch_scc1 L_npp"); S("s_mov_b64 exec, 1")
        e.vmem(f"buffer_load_dword v{vCU}, v{vSA}, {srd(WS)}, 0 offen sc1","f",w=[vCU],r=[vSA],count=False)
        S("s_mov_b64 exec, -1"); e.label("L_npp")
    if s+RING-2<NST: issue(s+RING-2)

D=48; ACC=96
def red_loads(n,vaddr,sbase,step,dst,flags):
    for i in range(n):
        o=i*step
        S(f"s_add_u32 s44, s{sbase}, {o&~4095}")
        e.vmem(f"buffer_load_dwordx4 v[{dst+4*i}:{dst+4*i+3}], v{vaddr}, {srd(WS)}, s44 offen offset:{o&4095}{flags}",("D",dst,i),w=R(dst+4*i,4),r=[vaddr])
def red_acc(n,dst,acc):
    for i in range(8): Vv(f"v_mov_b32 v{acc+i}, 0",w=[acc+i])
    for i in range(n):
        e.need(vm=[("D",dst,i)])
        d=dst+4*i
        for c in range(4):
            Vv(f"v_dot2c_f32_bf16 v{acc+2*c}, s50, v{d+c}",w=[acc+2*c],r=[acc+2*c,d+c],dot=True)
            Vv(f"v_dot2c_f32_bf16 v{acc+2*c+1}, s51, v{d+c}",w=[acc+2*c+1],r=[acc+2*c+1,d+c],dot=True)
def red9_setup():
    Vv("v_lshrrev_b32 v28, 3, v0",w=[28],r=[0]); Vv("v_and_b32 v29, 7, v0",w=[29],r=[0])
    Vv("v_lshlrev_b32 v43, 9, v28",w=[43],r=[28]); Vv("v_lshl_or_b32 v43, v29, 4, v43",w=[43],r=[29,43])
    S("s_lshl_b32 s44, s6, 14"); S("s_add_u32 s49, s49, s44"); S("s_lshl_b32 s44, s9, 7"); S("s_add_u32 s49, s49, s44")
def red9_finish(dst,acc):
    for i in range(8): Vv(f"v_add_f32_dpp v{acc+i}, v{acc+i}, v{acc+i} row_ror:8 row_mask:0xf bank_mask:0xf",w=[acc+i],r=[acc+i],dpp=True)
    for op in ("v_permlane16_swap_b32","v_permlane32_swap_b32"):
        for i in range(8): Vv(f"v_mov_b32 v{dst+i}, v{acc+i}",w=[dst+i],r=[acc+i])
        for i in range(8): Vv(f"{op} v{acc+i}, v{dst+i}",w=[acc+i,dst+i],r=[acc+i,dst+i],perm=True)
        for i in range(8): Vv(f"v_add_f32 v{acc+i}, v{acc+i}, v{dst+i}",w=[acc+i],r=[acc+i,dst+i])
    for i in range(4): Vv(f"v_cvt_pk_bf16_f32 v{dst+8+i}, v{acc+2*i}, v{acc+2*i+1}",w=[dst+8+i],r=[acc+2*i,acc+2*i+1])
    S("s_lshl_b32 s44, s5, 2"); S("s_lshr_b32 s45, s6, 3"); S("s_add_u32 s44, s44, s45"); S("s_lshl_b32 s44, s44, 2"); S("s_add_u32 s44, s44, s9")
    S(f"s_mul_i32 s44, s44, {8*2304}"); S("s_mul_i32 s45, s4, 1152"); S("s_add_u32 s44, s44, s45"); S("s_and_b32 s45, s6, 7"); S("s_lshl_b32 s45, s45, 4"); S("s_add_u32 s44, s44, s45")
    S("s_movk_i32 s45, 2304")
    Vv("v_mul_u32_u24 v44, s45, v0",w=[44],r=[0])
    S("s_mov_b64 exec, 0xff")
    e.vmem(f"buffer_store_dwordx4 v[{dst+8}:{dst+11}], v44, {srd(OUT)}, s44 offen offset:1024","o9",r=[44],store=R(dst+8,4))
    S("s_mov_b64 exec, -1")
def redm_setup():
    S("s_movk_i32 s45, 2304")
    Vv("v_lshlrev_b32 v22, 4, v0",w=[22],r=[0])
    Vv("v_and_b32 v45, 31, v0",w=[45],r=[0]); Vv("v_mul_u32_u24 v45, s45, v45",w=[45],r=[45]); Vv("v_lshrrev_b32 v46, 5, v0",w=[46],r=[0]); Vv("v_lshl_add_u32 v45, v46, 4, v45",w=[45],r=[45,46])
    S("s_lshl_b32 s44, s7, 15"); S("s_add_u32 s48, s48, s44"); S("s_lshl_b32 s44, s9, 13"); S("s_add_u32 s48, s48, s44")
    S("s_lshl_b32 s44, s5, 2"); S("s_lshr_b32 s45, s7, 1"); S("s_add_u32 s44, s44, s45"); S(f"s_mul_i32 s55, s44, {32*2304}")
    S("s_mul_i32 s45, s4, 1152"); S("s_add_u32 s55, s55, s45"); S("s_lshl_b32 s45, s99, 8"); S("s_add_u32 s55, s55, s45")
    S("s_and_b32 s45, s7, 1"); S("s_lshl_b32 s45, s45, 7"); S("s_add_u32 s55, s55, s45"); S("s_lshl_b32 s45, s9, 5"); S("s_add_u32 s55, s55, s45")
def redm_finish(dst,acc):
    for i in range(4): Vv(f"v_cvt_pk_bf16_f32 v{dst+i}, v{acc+2*i}, v{acc+2*i+1}",w=[dst+i],r=[acc+2*i,acc+2*i+1])
    e.vmem(f"buffer_store_dwordx4 v[{dst}:{dst+3}], v45, {srd(OUT)}, s55 offen","om",r=[45],store=R(dst,4))
if not K2:
    e.comment("---- 9th line reduce, then main reduce")
    S("s_mov_b32 s50, 0x3f80"); S("s_mov_b32 s51, 0x3f800000")
    red9_setup(); redm_setup()
    if SYNC: poll("L_pn",2,False)
    e.reset_haz(); e.vm=[]
    red_loads(4,43,49,4096,D," sc1"); red_acc(4,D,ACC); red9_finish(D,ACC)
    stamp(19)
    if SYNC: poll("L_pf",1,False)
    e.reset_haz(); e.vm=[]
    red_loads(8,22,48,1024,D+16," sc1"); red_acc(8,D+16,ACC); redm_finish(D,ACC)
else: stamp(19)
if opt["DBGT"]:
    e.wait_all(vm=True); S("s_memrealtime s[100:101]"); e.wait_all(lds=True)
    S("s_not_b32 s56, s56"); Vv("v_mov_b32 v1, s56",w=[1]); Vv("v_mov_b32 v2, s100",w=[2]); Vv("v_mov_b32 v23, 0",w=[23]); S("s_mov_b64 exec, 1")
    e.raw(f"buffer_atomic_umax v1, v23, {srd(DBG)}, 0 offen offset:4 sc1"); e.raw(f"buffer_atomic_umax v2, v23, {srd(DBG)}, 0 offen offset:8 sc1")
if STAMP:
    S("s_memrealtime s[100:101]"); e.wait_all(lds=True,vm=True)
    S("s_cmp_lg_u32 s9, 0"); S("s_cbranch_scc1 L_end")
    Vv("v_writelane_b32 v1, s56, 0",w=[1]); Vv("v_writelane_b32 v1, s57, 1",w=[1])
    for i in range(40): Vv(f"v_writelane_b32 v1, s{60+i}, {2+i}",w=[1])
    Vv("v_writelane_b32 v1, s100, 42",w=[1]); Vv("v_writelane_b32 v1, s101, 43",w=[1])
    Vv(f"v_writelane_b32 v1, s45, 44",w=[1]); Vv("v_lshlrev_b32 v23, 2, v0",w=[23],r=[0])
    S("s_lshl_b32 s44, s2, 8"); S(f"s_add_u32 s44, s44, {STB}"); S("s_mov_b32 exec_lo, -1"); S("s_mov_b32 exec_hi, 0xffff")
    e.vmem(f"buffer_store_dword v1, v23, {srd(WS)}, s44 offen","x",r=[1,23])
e.raw("s_endpgm")

e.label("L_compute"); e.reset_haz(); e.lds=[]; e.vm=[]
aR=R(2,4); aT=R(6,4); aT9=R(10,2); vL16=12; vO9=13; vZ=14; vI=15
T=16; Rdb=32; Rbig=40; accG=72; outA=136; pk=200; Pown=232; o9p=240
if opt["PRIO"]: S("s_setprio 2")
decode2()
S(f"s_mov_b32 s{DBG+2}, 256"); S(f"s_mov_b32 s{DBG+3}, 0x00020000")
Vv("v_and_b32 v14, 31, v0",w=[14],r=[0]); Vv("v_lshrrev_b32 v15, 5, v0",w=[15],r=[0])
Vv("v_lshlrev_b32 v12, 4, v0",w=[12],r=[0]); Vv("v_lshlrev_b32 v13, 4, v14",w=[13],r=[14])
Vv("v_lshl_or_b32 v13, v15, 14, v13",w=[13],r=[13,15])
Vv("v_bfe_u32 v16, v0, 1, 3",w=[16],r=[0]); Vv("v_xor_b32 v16, v16, v15",w=[16],r=[16,15]); Vv("v_lshlrev_b32 v16, 4, v16",w=[16],r=[16])
Vv("v_lshl_or_b32 v16, v14, 7, v16",w=[16],r=[16,14])
S("s_lshl_b32 s44, s9, 12")
Vv("v_add_u32 v2, s44, v16",w=[2],r=[16])
for ks in range(1,4): Vv(f"v_xor_b32 v{2+ks}, {32*ks}, v2",w=[2+ks],r=[2])
Vv("v_bfe_u32 v16, v0, 2, 2",w=[16],r=[0])
Vv("v_and_b32 v17, 1, v0",w=[17],r=[0]); Vv("v_bfe_u32 v18, v0, 1, 1",w=[18],r=[0])
Vv("v_lshlrev_b32 v17, 4, v17",w=[17],r=[17]); Vv("v_lshl_or_b32 v17, v18, 3, v17",w=[17],r=[17,18])
Vv("v_bfe_u32 v18, v0, 4, 1",w=[18],r=[0]); Vv("v_lshl_or_b32 v17, v18, 5, v17",w=[17],r=[17,18])
Vv("v_lshl_or_b32 v18, v15, 3, v16",w=[18],r=[15,16])
Vv("v_lshl_or_b32 v19, v18, 8, v17",w=[19],r=[18,17]); Vv("v_lshl_or_b32 v19, v16, 6, v19",w=[19],r=[16,19])
Vv("v_add_u32 v6, 0x4000, v19",w=[6],r=[19])
for t in range(1,4): Vv(f"v_xor_b32 v{6+t}, {64*t}, v6",w=[6+t],r=[6])
Vv("v_lshl_or_b32 v19, v18, 7, v17",w=[19],r=[18,17]); Vv("v_lshrrev_b32 v16, 1, v16",w=[16],r=[16]); Vv("v_lshl_or_b32 v19, v16, 6, v19",w=[19],r=[16,19])
Vv(f"v_add_u32 v10, {slot(12)}, v19",w=[10],r=[19]); Vv("v_xor_b32 v11, 64, v10",w=[11],r=[10])
Vv("v_mov_b32 v14, 0",w=[14]); Vv("v_mov_b32 v15, 1",w=[15])
S("s_lshl_b32 s50, s47, 2"); S("s_add_u32 s50, s50, s9")
S("s_lshl_b32 s55, s50, 7"); S(f"s_add_u32 s55, s55, {CNT+192*128}")
S("s_lshl_b32 s50, s50, 16")
S("s_lshl_b32 s44, s9, 16"); S("s_add_u32 s51, s48, s44"); S("s_lshl_b32 s44, s7, 10"); S("s_add_u32 s51, s51, s44")
S("s_lshl_b32 s44, s9, 17"); S("s_add_u32 s52, s49, s44"); S("s_lshl_b32 s44, s6, 9"); S("s_add_u32 s52, s52, s44")
cval=struct.unpack("<I",struct.pack("<f",(128**-0.5)*math.log2(math.e)))[0]
S(f"s_mov_b32 s53, {cval:#x}")
S("s_lshl_b32 s54, s47, 3"); S("s_add_u32 s54, s54, s7"); S("s_lshl_b32 s54, s54, 7"); S(f"s_add_u32 s54, s54, {CNT}")
S("s_lshl_b32 s58, s47, 2"); S("s_add_u32 s58, s58, s99"); S("s_lshl_b32 s58, s58, 2"); S("s_add_u32 s58, s58, s9"); S("s_lshl_b32 s58, s58, 7"); S(f"s_add_u32 s58, s58, {CNT+64*128}")
S("s_lshl_b32 s59, s47, 5")
e.wait_all(lds=True)
def cadd(sr,so,tag="cnt",count=True):
    S("s_mov_b64 exec, 1")
    e.vmem(f"buffer_atomic_add v{vI}, v{vZ}, {srd(sr)}, s{so} offen sc1",tag,r=[vI,vZ],count=count)
    S("s_mov_b64 exec, -1")
cur=[0]
def advance(s):
    d=slot(s)-cur[0]; cur[0]=slot(s)
    for r in aR+aT:
        if d>=0: Vv(f"v_add_u32 v{r}, {d}, v{r}",w=[r],r=[r])
        else: Vv(f"v_subrev_u32 v{r}, {-d}, v{r}",w=[r],r=[r])
def Rreg(s,ks):
    if s in (10,11): return Rbig+16*(s-10)+4*ks
    return Rdb+4*(ks&1)
def rd_R(dst,ks,off,tag):
    e.ds(f"ds_read_b128 v[{dst}:{dst+3}], v{aR[ks]} offset:{off}",tag,w=R(dst,4),r=[aR[ks]])
def rd_T(dst,a,off0,off1,tag):
    e.ds(f"ds_read_b64_tr_b16 v[{dst}:{dst+1}], v{a} offset:{off0}",tag,w=R(dst,2),r=[a])
    e.ds(f"ds_read_b64_tr_b16 v[{dst+2}:{dst+3}], v{a} offset:{off1}",tag,w=R(dst+2,2),r=[a])
def reads_for(s,ks):
    k=kind(s)
    if k in("P1","P2"):
        return (lambda: rd_R(Rreg(s,ks),ks,0,("R",s,ks)),
                [(lambda t=t: rd_T(T+4*t,aT[t],ks*4096,ks*4096+1024,("T",s,ks,t))) for t in range(4)])
    if k=="K":
        def two(t):
            for kk in (2*t,2*t+1): rd_R(Rbig+4*kk,kk%4,(kk//4)*16384,("K",kk))
        return (lambda: None,[(lambda t=t: two(t)) for t in range(4)])
    return (lambda: None,
            [(lambda t=t: rd_T(T+4*t,aT9[t%2],(2*ks+t//2)*2048,(2*ks+t//2)*2048+512,("T",s,ks,t))) for t in range(4)])
def cvt_tile(src,dst):
    for i in range(8):
        Vv(f"v_cvt_pk_bf16_f32 v{dst+i}, v{src+2*i}, v{src+2*i+1}",w=[dst+i],r=[src+2*i,src+2*i+1])
def stage(s,pre={},post={},atbar=None,nxt=True):
    k=kind(s)
    for ks in range(4):
        if ks==3:
            if nxt:
                advance(s+1)
                if atbar and atbar[0]: atbar[0]()
                barrier()
                if atbar and atbar[1]: atbar[1]()
                nr,nt=reads_for(s+1,0)
            else: nr,nt=(lambda:None),[(lambda:None)]*4
        else: nr,nt=reads_for(s,ks+1)
        nr()
        for t in range(4):
            for f in pre.get((ks,t),[]): f()
            e.need(lds=[("T",s,ks,t),("R",s,ks)])
            if k=="P1":   e.mfma(accG+16*t,T+4*t,Rreg(s,ks),None if (s==0 and ks==0) else accG+16*t)
            elif k=="P2":
                first=(ks==0 and (s in (10,13,15,17)))
                e.mfma(accG+16*t,Rreg(s,ks),T+4*t,None if first else accG+16*t)
            else:
                kk=2*ks+t//2; d=accG+16*(t%2)
                e.mfma(d,Rbig+4*kk,T+4*t,None if kk==0 else d)
            nt[t]()
            for f in post.get((ks,t),[]): f()
def PM(t,q,P,first=False,dst=None,vm=None):
    def f():
        if vm: e.need(vm=[vm])
        d=(outA+16*t) if dst is None else dst
        e.mfma(d,pk+8*t+4*q,P+4*q,None if (first and q==0) else d)
    return f
barrier()
nr,nt=reads_for(0,0); nr()
for t in range(4): nt[t]()
def grp_add():
    S("s_cmp_lg_u32 s9, 0"); S("s_cbranch_scc1 L_nga"); cadd(DBG,59,count=False); e.label("L_nga")
for s in range(9): stage(s,post={(0,1):[grp_add]} if (s==0 and SYNC) else {})
Sx=outA; tm=outA+16; tm2=outA+17; E=outA+32
for t in range(4):
    cvt_tile(accG+16*t,pk+8*t)
    for kk in (2*t,2*t+1):
        e.need(lds=[("K",kk)])
        e.mfma(Sx,Rbig+4*kk,pk+4*kk,None if kk==0 else Sx)
Vv(f"v_max3_f32 v{tm}, v{Sx}, v{Sx+1}, v{Sx+2}",w=[tm],r=[Sx,Sx+1,Sx+2])
Vv(f"v_max3_f32 v{tm2}, v{Sx+3}, v{Sx+4}, v{Sx+5}",w=[tm2],r=[Sx+3,Sx+4,Sx+5])
for i,d in ((6,tm),(8,tm2),(10,tm),(12,tm2)):
    Vv(f"v_max3_f32 v{d}, v{d}, v{Sx+i}, v{Sx+i+1}",w=[d],r=[d,Sx+i,Sx+i+1])
Vv(f"v_max3_f32 v{tm}, v{tm}, v{Sx+14}, v{Sx+15}",w=[tm],r=[tm,Sx+14,Sx+15])
Vv(f"v_max_f32 v{tm}, v{tm}, v{tm2}",w=[tm],r=[tm,tm2])
Vv(f"v_mov_b32 v{tm2}, v{tm}",w=[tm2],r=[tm])
Vv(f"v_permlane32_swap_b32 v{tm}, v{tm2}",w=[tm,tm2],r=[tm,tm2],perm=True)
Vv(f"v_max_f32 v{tm}, v{tm}, v{tm2}",w=[tm],r=[tm,tm2])
Vv(f"v_mul_f32 v{tm}, s53, v{tm}",w=[tm],r=[tm])
for i in range(16): Vv(f"v_fma_f32 v{E+i}, v{Sx+i}, s53, -v{tm}",w=[E+i],r=[Sx+i,tm])
for i in range(16): Vv(f"v_exp_f32 v{E+i}, v{E+i}",w=[E+i],r=[E+i],trans=True)
sm=outA+18
for i in range(4): Vv(f"v_add_f32 v{sm+i}, v{E+i}, v{E+4+i}",w=[sm+i],r=[E+i,E+4+i])
for j in (8,12):
    for i in range(4): Vv(f"v_add_f32 v{sm+i}, v{sm+i}, v{E+j+i}",w=[sm+i],r=[sm+i,E+j+i])
Vv(f"v_add_f32 v{sm}, v{sm}, v{sm+1}",w=[sm],r=[sm,sm+1]); Vv(f"v_add_f32 v{sm+2}, v{sm+2}, v{sm+3}",w=[sm+2],r=[sm+2,sm+3])
Vv(f"v_add_f32 v{sm}, v{sm}, v{sm+2}",w=[sm],r=[sm,sm+2])
Vv(f"v_mov_b32 v{tm2}, v{sm}",w=[tm2],r=[sm])
Vv(f"v_permlane32_swap_b32 v{sm}, v{tm2}",w=[sm,tm2],r=[sm,tm2],perm=True)
Vv(f"v_add_f32 v{sm}, v{sm}, v{tm2}",w=[sm],r=[sm,tm2])
Vv(f"v_rcp_f32 v{sm}, v{sm}",w=[sm],r=[sm],trans=True)
S("s_lshl_b32 s44, s6, 11"); S("s_add_u32 s44, s44, s50")
for i in range(16): Vv(f"v_mul_f32 v{E+i}, v{E+i}, v{sm}",w=[E+i],r=[E+i,sm])
cvt_tile(E,Pown)
for q in range(2):
    e.vmem(f"buffer_store_dwordx4 v[{Pown+4*q}:{Pown+4*q+3}], v{vL16}, {srd(WS)}, s44 offen offset:{1024*q} sc1","Pst",r=[vL16],store=R(Pown+4*q,4))
if STAMP: S("s_memrealtime s[60:61]"); e.wait_all(lds=True)
advance(10); barrier()
nr,nt=reads_for(10,0); nr()
for t in range(4): nt[t]()
def p_add():
    e.need(vm=["Pst"])
    if SYNC: cadd(WS,54)
stage(10,atbar=(p_add,None))
stage(11)
C=lambda t: (lambda: cvt_tile(accG+16*t,pk+8*t))
stage(12,pre={(0,0):[C(0)],(0,1):[C(1)]},
      post={(0,2):[C(2)],(0,3):[C(3)],(1,0):[PM(0,0,Pown,True),PM(0,1,Pown)],(1,2):[PM(1,0,Pown,True),PM(1,1,Pown)],
            (2,0):[PM(2,0,Pown,True),PM(2,1,Pown)],(2,2):[PM(3,0,Pown,True),PM(3,1,Pown)]})
def pub9(t9):
    def f():
        cvt_tile(Rbig+16*t9,o9p+8*t9)
        for q in range(2):
            S(f"s_add_u32 s44, s52, {(4*t9+2*q)*16384}")
            r0=o9p+8*t9+4*q
            e.vmem(f"buffer_store_dwordx4 v[{r0}:{r0+3}], v{vO9}, {srd(WS)}, s44 offen{PST}","O9st",r=[vO9],store=R(r0,4))
    return f
def ploads():
    for j in range(1,4):
        S(f"s_add_u32 s44, s8, {j}"); S("s_and_b32 s44, s44, 3"); S("s_and_b32 s45, s6, 28"); S("s_add_u32 s44, s44, s45")
        S("s_lshl_b32 s44, s44, 11"); S("s_add_u32 s44, s44, s50")
        for q in range(2):
            r0=Rbig+8*j+4*q
            e.vmem(f"buffer_load_dwordx4 v[{r0}:{r0+3}], v{vL16}, {srd(WS)}, s44 offen offset:{1024*q} sc1",("P",j),w=R(r0,4),r=[vL16])
stage(13,pre={(0,0):[C(0)],(0,1):[C(1)]},
      post={(0,3):[PM(0,0,Pown,True,dst=Rbig),PM(0,1,Pown,dst=Rbig)],(1,0):[PM(1,0,Pown,True,dst=Rbig+16),PM(1,1,Pown,dst=Rbig+16)],
            (2,0):[pub9(0)],(2,2):[pub9(1)]},
      atbar=(None,ploads))
stage(14)
allC={(0,t):[C(t)] for t in range(4)}
def pms(j,ks0):
    P=Rbig+8*j
    return {(ks0,0):[PM(0,0,P,vm=("P",j)),PM(0,1,P)],(ks0,2):[PM(1,0,P),PM(1,1,P)],(ks0+1,0):[PM(2,0,P),PM(2,1,P)],(ks0+1,2):[PM(3,0,P),PM(3,1,P)]}
def n_add():
    if SYNC and not K2: e.need(vm=["O9st"]); cadd(WS,55)
stage(15,pre=allC,post={(2,1):[n_add]})
stage(16,post=pms(1,1))
stage(17,pre=allC,post=pms(2,2))
stage(18,nxt=False)
P3=Rbig+24
def fin(t):
    cvt_tile(outA+16*t,accG+16*t)
    for q in range(2):
        S(f"s_add_u32 s44, s51, {(2*t+q)*8192}")
        r0=accG+16*t+4*q
        e.vmem(f"buffer_store_dwordx4 v[{r0}:{r0+3}], v{vL16}, {srd(WS)}, s44 offen{PST}","Mst",r=[vL16],store=R(r0,4))
for t in range(4):
    C(t)(); PM(t,0,P3,vm=("P",3))(); PM(t,1,P3)()
    if t>=2: fin(t-2)
fin(2); fin(3)
if STAMP: S("s_memrealtime s[62:63]")
if not K2:
    e.wait_all(vm=True)
    if SYNC: cadd(WS,58)
if STAMP:
    e.wait_all(vm=True); S("s_memrealtime s[64:65]"); e.wait_all(lds=True)
    S("s_cmp_lg_u32 s9, 0"); S("s_cbranch_scc1 L_end")
    Vv("v_writelane_b32 v1, s56, 0",w=[1]); Vv("v_writelane_b32 v1, s57, 1",w=[1])
    for i in range(6): Vv(f"v_writelane_b32 v1, s{60+i}, {2+i}",w=[1])
    Vv("v_lshlrev_b32 v2, 2, v0",w=[2],r=[0])
    S("s_lshl_b32 s44, s2, 8"); S(f"s_add_u32 s44, s44, {STB+192}"); S("s_mov_b64 exec, 0xff")
    e.vmem(f"buffer_store_dword v1, v2, {srd(WS)}, s44 offen","x",r=[1,2])
e.label("L_end")
e.raw("s_endpgm")
def kd(n,vg):
    return f'''.amdhsa_kernel {n}
  .amdhsa_next_free_vgpr {vg}
  .amdhsa_next_free_sgpr 102
  .amdhsa_accum_offset {vg}
  .amdhsa_group_segment_fixed_size 0
  .amdhsa_kernarg_size 104
  .amdhsa_user_sgpr_count 2
  .amdhsa_user_sgpr_kernarg_segment_ptr 1
  .amdhsa_system_sgpr_workgroup_id_x 1
  .amdhsa_float_denorm_mode_32 3
.end_amdhsa_kernel
'''
if K2:
    e.lines.append(".globl red_kernel\n.p2align 8\n.type red_kernel,@function\nred_kernel:")
    e.reset_haz(); e.vm=[]; e.lds=[]
    S("s_cmp_ge_u32 s2, 256"); S("s_cbranch_scc1 L_rend")
    for d,off in ((WS,96),(OUT,80)): S(f"s_load_dwordx2 s[{d}:{d+1}], s[0:1], {off}")
    S("s_bfe_u32 s4, s2, 0x10002")
    Vv("v_lshrrev_b32 v1, 6, v0",w=[1],r=[0])
    decode(); decode2()
    for d,n in ((OUT,512*2304),(WS,0x2000000)): S(f"s_mov_b32 s{d+2}, {n}"); S(f"s_mov_b32 s{d+3}, 0x00020000")
    S("s_mov_b32 s50, 0x3f80"); S("s_mov_b32 s51, 0x3f800000")
    S("s_cmp_lt_u32 s3, 4"); S("s_cbranch_scc1 L_r9")
    redm_setup(); e.wait_all(lds=True)
    red_loads(8,22,48,1024,D+16,""); red_acc(8,D+16,ACC); redm_finish(D,ACC)
    e.raw("s_endpgm")
    e.label("L_r9"); e.reset_haz(); e.vm=[]
    red9_setup(); e.wait_all(lds=True)
    red_loads(4,43,49,4096,D,""); red_acc(4,D,ACC); red9_finish(D,ACC)
    e.label("L_rend"); e.raw("s_endpgm")
bot='\n.section .rodata,"a"\n.p2align 6\n'+kd(KN,256)
if K2: bot+=".p2align 6\n"+kd("red_kernel",104)
sys.stdout.write(top+e.text()+bot)
sys.stderr.write(f"nops inserted: {e.nops}\n")
```

```python
import sys, math, struct
from emit import Emit, R
NAME="concat_heads__gqa_block_cached__mha_block_cached__near_ridge"
opt=dict(ROT1="full", STAMP=0, PRIO=0, NODMA=0, NOCOMP=0, NOSYNC=0, LOOP=1, CPF=1, PLD=13, SW=3, TH=2, RS=1, CBM="half", PS=1, KE=1, KPOS=1, PCK=15, O9S=14, PA=48, TB=3, TLB=0, PPL=1, R9S=17, MAP="mix")
for a in sys.argv[1:]:
    k,v=a.split("="); opt[k]=int(v) if v.lstrip("-").isdigit() else v
RING=4; STAMP=opt["STAMP"]; SYNC=not opt["NOSYNC"]
NST=19
INB=0x400000; IN9=0xC00000; CNT=0x200000; STB=0xC800000
SLOT=32768; AUXA=RING*SLOT; AUXB=AUXA+16384; LDSB=AUXA+32768
TMO=0x20000
KE=opt['KE']
def slot(s):
    if KE and s==9: return RING*SLOT
    if KE and s>9: s-=1
    return (s%RING)*SLOT
X,K,V,WQ,WO,OUT,DBG,WS=12,16,20,24,28,32,36,40
def srd(b): return f"s[{b}:{b+3}]"
e=Emit()
if opt["NOCOMP"]:
    e.mfma=lambda *a,**k: None
S=e.salu; Vv=e.valu
KN=NAME+"_kernel"
hdr=open("cdna_kernels/"+NAME+".s.ref").read().split("; Override launch")[0]
top=hdr+f"; @launch grid=(256,1,1) block=(512,1,1) lds={LDSB}\n"
top+=f'.amdgcn_target "amdgcn-amd-amdhsa--gfx950"\n.text\n.globl {KN}\n.p2align 8\n.type {KN},@function\n{KN}:\n'
def barrier(): e.raw("s_barrier")
def kind(s):
    if s<9: return "P1"
    if s==9: return "K"
    if s==12: return "W9"
    if s in (15,17): return "V3"
    if s in (16,18): return "W2"
    return "P2"
def decode2():
    S("s_lshr_b32 s7, s6, 2"); S("s_and_b32 s8, s6, 3")
    S("s_lshl_b32 s47, s4, 2"); S("s_add_u32 s47, s47, s5")
    mk={"full":3,"half":2,"none":0}
    ma=mk[opt.get("CBA",opt["CBM"])]; mb=mk[opt.get("CBB",opt["CBM"])]
    S("s_cmp_eq_u32 s4, 0"); S(f"s_cselect_b32 s58, {ma}, {mb}"); S("s_and_b32 s58, s58, s5"); S("s_add_u32 s58, s58, s8")
    S("s_and_b32 s58, s58, 3")
    S("s_lshl_b32 s48, s47, 2"); S("s_add_u32 s48, s48, s58"); S("s_lshl_b32 s48, s48, 18"); S(f"s_add_u32 s48, s48, {INB}")
    S("s_lshl_b32 s49, s47, 19"); S(f"s_add_u32 s49, s49, {IN9}")
def mk_tags(vsrc):
    Vv(f"v_readfirstlane_b32 s44, v{vsrc}",r=[vsrc],rfl=True,swr=["s44"])
    S("s_mov_b32 s88, 0"); S("s_mov_b32 s89, 0x10001")
    S("s_bfe_u32 s90, s44, 0x10003"); S("s_bfe_u32 s45, s44, 0x10002"); S("s_lshl_b32 s45, s45, 16"); S("s_or_b32 s90, s90, s45")
    S("s_bfe_u32 s91, s44, 0x10001"); S("s_and_b32 s45, s44, 1"); S("s_lshl_b32 s45, s45, 16"); S("s_or_b32 s91, s91, s45")
S("s_cmp_ge_u32 s2, 256"); S("s_cbranch_scc1 L_end")
if STAMP: S("s_memrealtime s[56:57]")
MIX=opt["MAP"]=="mix"
if MIX: S("s_lshr_b32 s4, s2, 7"); S("s_xor_b32 s4, s4, 1")
else: S("s_bfe_u32 s4, s2, 0x10002")
S("s_mul_i32 s44, s4, 40"); S("s_add_u32 s44, s0, s44"); S("s_addc_u32 s45, s1, 0")
for d,off in ((X,0),(WQ,24),(K,8),(V,16),(WO,32)): S(f"s_load_dwordx2 s[{d}:{d+1}], s[44:45], {off}")
for d,off in ((WS,96),(OUT,80),(DBG,88)): S(f"s_load_dwordx2 s[{d}:{d+1}], s[0:1], {off}")
Vv("v_lshrrev_b32 v1, 6, v0",w=[1],r=[0])
S("s_bfe_u32 s5, s2, 0x20003")
if MIX:
    S("s_bfe_u32 s46, s2, 0x20005"); S("s_and_b32 s6, s2, 7"); S("s_lshl_b32 s6, s6, 2"); S("s_add_u32 s6, s6, s46")
else:
    S("s_lshr_b32 s46, s2, 5"); S("s_and_b32 s6, s2, 3"); S("s_lshl_b32 s6, s6, 3"); S("s_add_u32 s6, s6, s46")
Vv("v_readfirstlane_b32 s3, v1",r=[1],rfl=True,swr=["s3"])
Vv("v_and_b32 v0, 63, v0",w=[0],r=[0])
S("s_and_b32 s9, s3, 3")
for d,n in ((X,512*1152),(WQ,576*8192),(WS,0x10000000)): S(f"s_mov_b32 s{d+2}, {n}"); S(f"s_mov_b32 s{d+3}, 0x00020000")
S("s_cmp_lt_u32 s3, 4"); S("s_cbranch_scc1 L_compute")

vX,vV,vQ,vO,v9=R(2,4),R(6,4),R(10,4),R(14,4),R(18,4)
vL16=22; vZ=23; vSA=24; vSN=25; vCU=26; vEX=27; vO9=33; vI=34; vAX=36; vAY=37
Vv("v_lshrrev_b32 v28, 3, v0",w=[28],r=[0]); Vv("v_and_b32 v29, 7, v0",w=[29],r=[0])
Vv("v_lshrrev_b32 v30, 4, v0",w=[30],r=[0]); Vv("v_and_b32 v31, 15, v0",w=[31],r=[0])
S("s_movk_i32 s45, 1152")
Vv("v_xor_b32 v32, v29, v30",w=[32],r=[29,30]); Vv("v_lshlrev_b32 v32, 4, v32",w=[32],r=[32])
Vv("v_mad_u32_u24 v2, v28, s45, v32",w=[2],r=[28,32])
Vv("v_lshlrev_b32 v35, 2, v30",w=[35],r=[30]); Vv("v_xor_b32 v35, v35, v31",w=[35],r=[35,31]); Vv("v_lshlrev_b32 v35, 4, v35",w=[35],r=[35])
Vv("v_lshl_or_b32 v10, v30, 13, v35",w=[10],r=[30,35])
Vv("v_xor_b32 v39, 64, v2",w=[39],r=[2])
for j in range(1,4):
    Vv(f"v_add_u32 v{vX[j]}, {j*(9216-1024)}, v{2 if j%2==0 else 39}",w=[vX[j]],r=[2,39])
    Vv(f"v_add_u32 v{vQ[j]}, {j*(32768-1024)}, v10",w=[vQ[j]],r=[10])
S("s_lshl_b32 s52, s5, 2"); S("s_add_u32 s52, s52, s9"); S("s_mul_i32 s50, s52, 36864")
S("s_lshl_b32 s51, s9, 17"); S("s_lshl_b32 s44, s6, 8"); S("s_add_u32 s51, s51, s44")
S("s_lshl_b32 s53, s9, 12")
def rot(kind_,dst):
    if MIX and kind_=="full":
        S(f"s_add_u32 s{dst}, s5, s46"); S(f"s_lshl_b32 s{dst}, s{dst}, 1"); S(f"s_cmp_ge_u32 s{dst}, 9"); S("s_cselect_b32 s44, 9, 0"); S(f"s_sub_u32 s{dst}, s{dst}, s44")
    elif MIX and kind_=="half":
        S(f"s_xor_b32 s{dst}, s5, s46"); S(f"s_and_b32 s{dst}, s{dst}, 2"); S(f"s_lshl_b32 s{dst}, s{dst}, 1")
    elif kind_=="full":
        S(f"s_lshl_b32 s{dst}, s5, 1"); S(f"s_add_u32 s{dst}, s{dst}, s46"); S(f"s_cmp_ge_u32 s{dst}, 9"); S("s_cselect_b32 s44, 9, 0"); S(f"s_sub_u32 s{dst}, s{dst}, s44")
    elif kind_=="none": S(f"s_mov_b32 s{dst}, 0")
    elif kind_=="half":
        S(f"s_lshr_b32 s{dst}, s5, 1"); S(f"s_lshl_b32 s{dst}, s{dst}, 2"); S("s_lshr_b32 s44, s46, 1"); S(f"s_add_u32 s{dst}, s{dst}, s44")
ra=opt.get("ROTA",opt["ROT1"]); rb_=opt.get("ROTB",opt["ROT1"])
rot(ra,54)
if rb_!=ra:
    rot(rb_,55); S("s_cmp_eq_u32 s4, 0"); S("s_cselect_b32 s54, s54, s55")
e.wait_all(lds=True)
def dma(v,sr,so,j,tag):
    if opt["NODMA"]: return
    e.vmem(f"buffer_load_dwordx4 v{v}, {srd(sr)}, s{so} offen offset:{1024*j} lds",tag,r=[v],dma=True)
def setm0(off): S(f"s_add_u32 m0, s53, {off}",m0=True)
def issue(s,dyn=False):
    k=kind(s); tag=("L",s)
    if k=="P1":
        S("s_lshl_b32 s44, s54, 7")
        if dyn: S("s_add_u32 m0, s53, s98",m0=True)
        else: setm0(slot(s))
        S("s_add_u32 s44, s44, s50")
        S("s_lshl_b32 s45, s54, 19"); S("s_add_u32 s45, s45, s51")
        for j in range(4): dma(vX[j],X,44,j,tag)
        if dyn: S("s_add_u32 m0, m0, 16384",m0=True)
        else: setm0(slot(s)+16384)
        S("s_add_u32 s54, s54, 1")
        for j in range(4): dma(vQ[j],WQ,45,j,tag)
        S("s_cmp_eq_u32 s54, 9"); S("s_cselect_b32 s54, 0, s54")
    elif k=="K":
        S("s_lshr_b32 s44, s6, s10"); S("s_lshl_b32 s44, s44, 13"); S("s_add_u32 s44, s44, s52"); setm0(slot(s)); S("s_add_u32 s45, s44, 128")
        for j in range(4): dma(vV[j],K,44,j,tag)
        setm0(slot(s)+16384); e.nop(1)
        for j in range(4): dma(vV[j],K,45,j,tag)
    elif k=="W9":
        S("s_lshl_b32 s44, s6, 2"); S("s_add_u32 s44, s44, s9"); S(f"s_mul_i32 s44, s44, {32*1152}"); setm0(slot(s)); S("s_add_u32 s44, s44, 1024")
        for j in range(4): dma(v9[j],WO,44,j,tag)
    elif k=="V3":
        js=2 if s==15 else 3
        S(f"s_add_u32 s45, s8, {js}"); S("s_and_b32 s45, s45, 3"); S("s_and_b32 s44, s6, 28"); S("s_add_u32 s45, s45, s44")
        S("s_lshr_b32 s44, s45, s10"); S("s_lshl_b32 s44, s44, 13"); S("s_add_u32 s44, s44, s52"); setm0(slot(s)); S("s_add_u32 s45, s44, 128")
        for j in range(4): dma(vV[j],V,44,j,tag)
        setm0(slot(s)+16384); e.nop(1)
        for j in range(4): dma(vV[j],V,45,j,tag)
    elif k=="W2":
        for js in (2,3):
            S(f"s_add_u32 s45, s8, {js}"); S("s_and_b32 s45, s45, 3"); S("s_and_b32 s44, s6, 28"); S("s_add_u32 s45, s45, s44")
            S("s_lshl_b32 s44, s45, 2"); S("s_add_u32 s44, s44, s9"); S(f"s_mul_i32 s44, s44, {32*1152}"); S("s_lshl_b32 s45, s58, 8"); setm0(slot(s)+16384*(js-2)); S("s_add_u32 s44, s44, s45")
            if s==18: S("s_add_u32 s44, s44, 128")
            for j in range(4): dma(v9[j],WO,44,j,tag)
    else:
        js,half={10:(0,0),11:(0,1),13:(1,0),14:(1,1)}[s]
        S(f"s_add_u32 s45, s8, {js}"); S("s_and_b32 s45, s45, 3"); S("s_and_b32 s44, s6, 28"); S("s_add_u32 s45, s45, s44")
        S("s_lshr_b32 s44, s45, s10"); S("s_lshl_b32 s44, s44, 13"); S("s_add_u32 s44, s44, s52")
        if half: S("s_add_u32 s44, s44, 128")
        setm0(slot(s))
        S(f"s_mul_i32 s45, s45, {128*1152}"); S("s_add_u32 s45, s45, s55")
        for j in range(4): dma(vV[j],V,44,j,tag)
        setm0(slot(s)+16384)
        if half: S(f"s_add_u32 s45, s45, {64*1152}")
        else: e.nop(1)
        for j in range(4): dma(vO[j],WO,45,j,tag)
issue(0)
decode2()
S("s_lshl_b32 s96, s47, 7"); S(f"s_add_u32 s96, s96, {CNT}")
S("s_lshl_b32 s44, s47, 2"); S("s_add_u32 s44, s44, s9"); S("s_lshl_b32 s95, s44, 16")
Vv("v_mov_b32 v23, 0",w=[23])
e.vmem(f"buffer_load_dword v{vSN}, v23, {srd(WS)}, s96 offen sc1","snap",w=[vSN],r=[23])
Vv("v_lshlrev_b32 v22, 4, v0",w=[22],r=[0])
if opt["CPF"]:
    S("s_getpc_b64 s[44:45]"); e.label("L_pc")
    S("s_lshr_b32 s59, s2, 3"); S("s_lshl_b32 s59, s59, 2"); S("s_add_u32 s59, s59, s9"); S("s_cmp_ge_u32 s59, (L_end-L_pc)/1024"); S("s_cbranch_scc1 L_nocpf")
    S("s_lshl_b32 s59, s59, 10"); S("s_add_u32 s44, s44, s59"); S("s_addc_u32 s45, s45, 0")
    e.vmem(f"global_load_dwordx4 v[40:43], v22, s[44:45]","cpf",w=R(40,4),r=[22],count=False)
    e.label("L_nocpf")
if not (KE and opt["KPOS"]==0): issue(1)
S("s_sub_u32 s10, 1, s4"); S("s_add_u32 s11, s4, 17")
for d,n in ((WO,576*8192),(OUT,512*2304),(DBG,256)): S(f"s_mov_b32 s{d+2}, {n}")
S(f"s_lshl_b32 s{K+2}, 0x200000, s4"); S(f"s_mov_b32 s{V+2}, s{K+2}")
for d in (K,V,WO,OUT,DBG): S(f"s_mov_b32 s{d+3}, 0x00020000")
S("s_movk_i32 s45, 1152")
Vv("v_lshl_or_b32 v6, v28, 8, v32",w=[6],r=[28,32]); Vv("v_xor_b32 v39, 64, v6",w=[39],r=[6])
Vv("v_mad_u32_u24 v14, v30, s45, v35",w=[14],r=[30,35])
Vv("v_and_b32 v38, 1, v30",w=[38],r=[30]); Vv("v_lshlrev_b32 v38, 2, v38",w=[38],r=[38]); Vv("v_xor_b32 v38, v38, v29",w=[38],r=[38,29]); Vv("v_lshlrev_b32 v38, 4, v38",w=[38],r=[38])
Vv("v_mad_u32_u24 v18, v28, s45, v38",w=[18],r=[28,38])
for j in range(1,4):
    Vv(f"v_add_u32 v{vV[j]}, {j*1024}, v{6 if j%2==0 else 39}",w=[vV[j]],r=[6,39])
    Vv(f"v_add_u32 v{vO[j]}, {j*(4608-1024)}, v14",w=[vO[j]],r=[14])
    Vv(f"v_add_u32 v{v9[j]}, {j*(9216-1024)}, v18",w=[v9[j]],r=[18])
Vv("v_mov_b32 v34, 1",w=[34]); Vv("v_mov_b32 v24, 0x10001",w=[24]); Vv("v_mov_b32 v26, 0x80008000",w=[26])
Vv("v_and_b32 v33, 31, v0",w=[33],r=[0]); Vv("v_lshlrev_b32 v33, 4, v33",w=[33],r=[33]); Vv("v_lshrrev_b32 v38, 5, v0",w=[38],r=[0]); Vv("v_lshl_or_b32 v33, v38, 14, v33",w=[33],r=[33,38])
S(f"s_add_u32 s44, s53, {AUXA}"); Vv("v_add_u32 v36, s44, v22",w=[36],r=[22])
S("s_lshl_b32 s44, s9, 11"); S(f"s_add_u32 s44, s44, {AUXA}"); Vv("v_add_u32 v37, s44, v22",w=[37],r=[22])
S("s_lshl_b32 s52, s52, s11")
S(f"s_mul_i32 s55, s9, {16*1152}"); S("s_lshl_b32 s44, s58, 8"); S("s_add_u32 s55, s55, s44")
S("s_lshl_b32 s59, s47, 5")
if opt["TLB"]:
    S("s_lshl_b32 s44, s9, 16"); S("s_add_u32 s44, s44, s48"); Vv("v_mov_b32 v40, s44",w=[40])
    S("s_lshl_b32 s44, s9, 17"); S("s_add_u32 s44, s44, s49"); Vv("v_writelane_b32 v40, s44, 1",w=[40])
    Vv("v_writelane_b32 v40, s95, 2",w=[40])
    S("s_mov_b64 exec, 7")
    e.vmem(f"buffer_load_dword v41, v40, {srd(WS)}, 0 offen sc1","tlb",w=[41],r=[40])
    S("s_mov_b64 exec, 1"); S(f"s_mul_i32 s44, s5, {128*2304}")
    e.vmem(f"buffer_load_dword v41, v23, {srd(OUT)}, s44 offen sc1","tlb",w=[41],r=[23])
    S("s_mov_b64 exec, -1")
if KE and opt["KPOS"]<2: issue(9)
if KE and opt["KPOS"]==0: issue(1)
def stamp(i):
    if STAMP and i<14: S(f"s_mem{'real' if STAMP==1 else ''}time s[{60+2*i}:{61+2*i}]")
vML=24; vMS=26; vCK=27
IO=48
sidx={0:0,2:1,8:2,9:3,10:4,11:5,12:6,14:7,16:8,17:9,18:10}
def ploads(fl=" sc1"):
    for j in range(1,4):
        S(f"s_add_u32 s44, s8, {j}"); S("s_and_b32 s44, s44, 3"); S("s_and_b32 s45, s6, 28"); S("s_add_u32 s44, s44, s45")
        S("s_lshl_b32 s44, s44, 11"); S("s_add_u32 s44, s44, s95")
        for q in range(2):
            r0=IO+8*(j-1)+4*q
            e.vmem(f"buffer_load_dwordx4 v[{r0}:{r0+3}], v{vL16}, {srd(WS)}, s44 offen offset:{1024*q}{fl}","Pld",w=R(r0,4),r=[vL16])
def lstage(s):
    extra={0:["snap"]}.get(s,[])
    if s!=15: e.need(vm=[("L",s)]+extra)
    barrier()
    if s in sidx: stamp(sidx[s])
    if s==10:
        for q in range(2): e.ds(f"ds_read_b128 v[{IO+4*q}:{IO+4*q+3}], v{vAX} offset:{1024*q}","pr",w=R(IO+4*q,4),r=[vAX])
    if s==14:
        for i in range(4): e.ds(f"ds_read_b128 v[{IO+24+4*i}:{IO+24+4*i+3}], v{vAX} offset:{1024*i}","pr",w=R(IO+24+4*i,4),r=[vAX])
    nx={7:10,8:11,9:12,10:13,11:None}.get(s,s+2) if KE else s+2
    if nx is not None and nx<NST: issue(nx)
    if KE and opt["KPOS"]==2 and s==0: issue(9)
    if s==0:
        mk_tags(vSN)
        for i in range(4): S(f"s_lshl_b32 s{84+i}, s{88+i}, 15")
    if s==10:
        S("s_lshl_b32 s44, s6, 11"); S("s_add_u32 s44, s44, s95")
        e.wait_all(lds=True)
        for i in range(8): Vv(f"v_bfi_b32 v{IO+i}, v{vMS}, s{84+i%4}, v{IO+i}",w=[IO+i],r=[IO+i,vMS])
        for q in range(2):
            e.vmem(f"buffer_store_dwordx4 v[{IO+4*q}:{IO+4*q+3}], v{vL16}, {srd(WS)}, s44 offen offset:{1024*q} sc1","Pst",r=[vL16],store=R(IO+4*q,4))
    if s==opt["PLD"]: ploads("" if opt["PPL"] else " sc1")
    if s==14:
        e.wait_all(lds=True)
        for i in range(16): Vv(f"v_bfi_b32 v{IO+24+i}, v{vML}, s{88+i%4}, v{IO+24+i}",w=[IO+24+i],r=[IO+24+i,vML])
    if s==opt["PCK"]:
        e.need(vm=["Pld"])
        S("s_mov_b32 s94, 0")
        e.label("L_pchk")
        for i in range(24):
            Vv(f"v_xor_b32 v{IO+i}, s{84+i%4}, v{IO+i}",w=[IO+i],r=[IO+i])
        Vv(f"v_or3_b32 v{vCK}, v{IO}, v{IO+1}, v{IO+2}",w=[vCK],r=R(IO,3))
        for i in range(3,23,2): Vv(f"v_or3_b32 v{vCK}, v{vCK}, v{IO+i}, v{IO+i+1}",w=[vCK],r=[vCK,IO+i,IO+i+1])
        Vv(f"v_or_b32 v{vCK}, v{vCK}, v{IO+23}",w=[vCK],r=[vCK,IO+23])
        Vv(f"v_and_b32 v{vCK}, v{vCK}, v{vMS}",w=[vCK],r=[vCK,vMS])
        Vv(f"v_cmp_ne_u32 vcc, 0, v{vCK}",r=[vCK],swr=["vcc"])
        S("s_cbranch_vccz L_pok")
        if not SYNC: S("s_branch L_pok")
        S("s_add_u32 s94, s94, 1"); S(f"s_cmp_ge_u32 s94, {TMO}"); S("s_cbranch_scc1 L_pok")
        S("s_sleep 1")
        q0=list(e.vm); ploads(); e.raw("s_waitcnt vmcnt(0)"); e.vm=q0
        S("s_branch L_pchk")
        e.label("L_pok")
        for j in range(1,4):
            for q in range(2):
                r0=IO+8*(j-1)+4*q
                off=(16384+(j-1)*8192 if j<3 else 0)+1024*q
                e.ds(f"ds_write_b128 v{vAY}, v[{r0}:{r0+3}] offset:{off}","pw",r=[vAY]+R(r0,4))
        e.wait_all(lds=True)
    if s==opt["O9S"]:
        S("s_lshl_b32 s44, s9, 17"); S("s_add_u32 s45, s49, s44"); S("s_lshl_b32 s44, s6, 9"); S("s_add_u32 s45, s45, s44")
        for i in range(4):
            S(f"s_add_u32 s44, s45, {2*i*16384}")
            r0=IO+24+4*i
            e.vmem(f"buffer_store_dwordx4 v[{r0}:{r0+3}], v{vO9}, {srd(WS)}, s44 offen sc1","O9st",r=[vO9],store=R(r0,4))
    if s==opt["R9S"]:
        Vv("v_lshlrev_b32 v43, 9, v28",w=[43],r=[28]); Vv("v_lshl_or_b32 v43, v29, 4, v43",w=[43],r=[29,43])
        S("s_lshl_b32 s44, s6, 14"); S("s_add_u32 s49, s49, s44"); S("s_lshl_b32 s44, s9, 7"); S("s_add_u32 s49, s49, s44")
        for i in range(4):
            S(f"s_add_u32 s44, s49, {i*4096}")
            e.vmem(f"buffer_load_dwordx4 v[{104+4*i}:{107+4*i}], v43, {srd(WS)}, s44 offen sc1",("D9",i),w=R(104+4*i,4),r=[43])
    if s==12 and SYNC:
        S("s_or_b32 s44, s6, s9"); S("s_cmp_lg_u32 s44, 0"); S("s_cbranch_scc1 L_gr_n"); S("s_mov_b64 exec, 1")
        e.raw(f"buffer_load_dword v42, v23, {srd(DBG)}, s59 offen sc1")
        S("s_mov_b64 exec, -1"); e.label("L_gr_n")
    if s==16 and SYNC:
        e.comment("one wave per group moves the epoch on, once all 32 WGs of the group have read it")
        S("s_or_b32 s44, s6, s9"); S("s_cmp_lg_u32 s44, 0"); S("s_cbranch_scc1 L_gr_done")
        S("s_mov_b64 exec, 1"); S("s_mov_b32 s94, 0")
        e.label("L_gr")
        e.raw("v_cmp_gt_u32 vcc, 32, v42"); S("s_cbranch_vccz L_gr_go")
        S("s_add_u32 s94, s94, 1"); S(f"s_cmp_ge_u32 s94, {TMO}"); S("s_cbranch_scc1 L_gr_go")
        S("s_sleep 2")
        e.raw(f"buffer_load_dword v42, v23, {srd(DBG)}, s59 offen sc1"); e.raw("s_waitcnt vmcnt(0)")
        S("s_branch L_gr")
        e.label("L_gr_go")
        e.raw(f"buffer_atomic_add v{vI}, v23, {srd(WS)}, s96 offen sc1")
        S("s_mov_b64 exec, -1")
        e.label("L_gr_done")
for s in range(NST):
    if opt["LOOP"] and 3<=s<=6:
        if s==3:
            S(f"s_mov_b32 s98, {slot(5)}"); S("s_mov_b32 s94, 4")
            e.label("L_lloop")
            q0=list(e.vm)
            e.need(vm=[("L",3)]); barrier(); issue(5,dyn=True)
            S("s_add_u32 s98, s98, 0x8000"); S("s_and_b32 s98, s98, 0x1ffff"); S("s_sub_u32 s94, s94, 1"); S("s_cmp_lg_u32 s94, 0"); S("s_cbranch_scc1 L_lloop")
            assert opt["NODMA"] or [t for t in q0]==[("L",3)]*8+[("L",4)]*8 and e.vm==[("L",4)]*8+[("L",5)]*8,(q0,e.vm)
            if not opt["NODMA"]: e.vm=[("L",7)]*8+[("L",8)]*8
        continue
    lstage(s)

D=48; ACC=96
def reduce_all(lbl,n,vaddr,sbase,step,dst,acc):
    S("s_mov_b32 s94, 0")
    e.label(lbl); e.reset_haz(); e.vm=[]
    for i in range(n):
        o=i*step
        S(f"s_add_u32 s44, s{sbase}, {o&~4095}")
        e.vmem(f"buffer_load_dwordx4 v[{dst+4*i}:{dst+4*i+3}], v{vaddr}, {srd(WS)}, s44 offen offset:{o&4095} sc1",("D",i),w=R(dst+4*i,4),r=[vaddr])
    for i in range(8): Vv(f"v_mov_b32 v{acc+i}, 0",w=[acc+i])
    Vv(f"v_mov_b32 v{vCK}, 0",w=[vCK])
    for i in range(n):
        e.need(vm=[("D",i)])
        d=dst+4*i
        for c in range(4):
            Vv(f"v_dot2c_f32_bf16 v{acc+2*c}, s50, v{d+c}",w=[acc+2*c],r=[acc+2*c,d+c],dot=True)
            Vv(f"v_dot2c_f32_bf16 v{acc+2*c+1}, s51, v{d+c}",w=[acc+2*c+1],r=[acc+2*c+1,d+c],dot=True)
        for c in range(1,4): Vv(f"v_xor_b32 v{d+c}, s{88+c}, v{d+c}",w=[d+c],r=[d+c])
        Vv(f"v_or3_b32 v{vCK}, v{vCK}, v{d}, v{d+1}",w=[vCK],r=[vCK,d,d+1]); Vv(f"v_or3_b32 v{vCK}, v{vCK}, v{d+2}, v{d+3}",w=[vCK],r=[vCK,d+2,d+3])
    Vv(f"v_and_b32 v{vCK}, v{vCK}, v{vML}",w=[vCK],r=[vCK,vML])
    Vv(f"v_cmp_ne_u32 vcc, 0, v{vCK}",r=[vCK],swr=["vcc"])
    S(f"s_cbranch_vccz {lbl}_ok")
    if not SYNC: S(f"s_branch {lbl}_ok")
    S("s_add_u32 s94, s94, 1"); S(f"s_cmp_ge_u32 s94, {TMO}"); S(f"s_cbranch_scc1 {lbl}_ok")
    S(f"s_sleep {opt['RS']}"); S(f"s_branch {lbl}")
    e.label(lbl+"_ok")
def reduce_ps(lbl,n,vaddr,sbase,step,dst,acc,pre=False):
    S("s_mov_b32 s94, 0"); S(f"s_mov_b32 s93, {(1<<n)-1}")
    if pre: S(f"s_branch {lbl}_w")
    e.label(lbl); e.reset_haz(); e.vm=[]
    for i in range(n):
        o=i*step
        S(f"s_bitcmp1_b32 s93, {i}"); S(f"s_cbranch_scc0 {lbl}_s{i}")
        S(f"s_add_u32 s44, s{sbase}, {o&~4095}")
        e.vmem(f"buffer_load_dwordx4 v[{dst+4*i}:{dst+4*i+3}], v{vaddr}, {srd(WS)}, s44 offen offset:{o&4095} sc1",("D",i),w=R(dst+4*i,4),r=[vaddr])
        e.label(f"{lbl}_s{i}")
    e.label(f"{lbl}_w")
    e.wait_all(vm=True)
    for i in range(n):
        d=dst+4*i
        S(f"s_bitcmp1_b32 s93, {i}"); S(f"s_cbranch_scc0 {lbl}_c{i}")
        for c in range(1,4): Vv(f"v_xor_b32 v{acc+c}, s{88+c}, v{d+c}",w=[acc+c],r=[d+c])
        Vv(f"v_or3_b32 v{vCK}, v{d}, v{acc+1}, v{acc+2}",w=[vCK],r=[d,acc+1,acc+2])
        Vv(f"v_or_b32 v{vCK}, v{vCK}, v{acc+3}",w=[vCK],r=[vCK,acc+3])
        Vv(f"v_and_b32 v{vCK}, v{vCK}, v{vML}",w=[vCK],r=[vCK,vML])
        Vv(f"v_cmp_ne_u32 vcc, 0, v{vCK}",r=[vCK],swr=["vcc"])
        S(f"s_cbranch_vccnz {lbl}_c{i}")
        S(f"s_bitset0_b32 s93, {i}")
        e.label(f"{lbl}_c{i}")
    S("s_cmp_eq_u32 s93, 0"); S(f"s_cbranch_scc1 {lbl}_ok")
    if not SYNC: S(f"s_branch {lbl}_ok")
    S("s_add_u32 s94, s94, 1"); S(f"s_cmp_lt_u32 s94, {TMO}"); S(f"s_cbranch_scc1 {lbl}")
    e.label(lbl+"_ok")
    for i in range(8): Vv(f"v_mov_b32 v{acc+i}, 0",w=[acc+i])
    for i in range(n):
        d=dst+4*i
        for c in range(4):
            Vv(f"v_dot2c_f32_bf16 v{acc+2*c}, s50, v{d+c}",w=[acc+2*c],r=[acc+2*c,d+c],dot=True)
            Vv(f"v_dot2c_f32_bf16 v{acc+2*c+1}, s51, v{d+c}",w=[acc+2*c+1],r=[acc+2*c+1,d+c],dot=True)
reduce=reduce_ps if opt["PS"] else reduce_all
S("s_mov_b32 s50, 0x3f80"); S("s_mov_b32 s51, 0x3f800000")
S("s_movk_i32 s45, 2304")
Vv("v_mul_u32_u24 v44, s45, v0",w=[44],r=[0])
Vv("v_and_b32 v45, 31, v0",w=[45],r=[0]); Vv("v_mul_u32_u24 v45, s45, v45",w=[45],r=[45]); Vv("v_lshrrev_b32 v46, 5, v0",w=[46],r=[0]); Vv("v_lshl_add_u32 v45, v46, 4, v45",w=[45],r=[45,46])
S("s_lshl_b32 s44, s7, 15"); S("s_add_u32 s48, s48, s44"); S("s_lshl_b32 s44, s9, 13"); S("s_add_u32 s48, s48, s44")
S("s_lshl_b32 s44, s5, 2"); S("s_lshr_b32 s45, s7, 1"); S("s_add_u32 s44, s44, s45"); S(f"s_mul_i32 s55, s44, {32*2304}")
S("s_mul_i32 s52, s4, 1152"); S("s_add_u32 s55, s55, s52"); S("s_lshl_b32 s45, s58, 8"); S("s_add_u32 s55, s55, s45")
S("s_and_b32 s45, s7, 1"); S("s_lshl_b32 s45, s45, 6"); S("s_add_u32 s55, s55, s45"); S("s_lshr_b32 s45, s9, 1"); S("s_lshl_b32 s45, s45, 7"); S("s_add_u32 s55, s55, s45")
S("s_and_b32 s45, s9, 1"); S("s_lshl_b32 s45, s45, 5"); S("s_add_u32 s55, s55, s45")
S("s_lshl_b32 s44, s5, 2"); S("s_lshr_b32 s45, s6, 3"); S("s_add_u32 s44, s44, s45"); S("s_lshl_b32 s44, s44, 2"); S("s_add_u32 s44, s44, s9")
S(f"s_mul_i32 s44, s44, {8*2304}"); S("s_add_u32 s52, s52, s44"); S("s_and_b32 s45, s6, 7"); S("s_lshl_b32 s45, s45, 4"); S("s_add_u32 s52, s52, s45")
for i in range(4): Vv(f"v_mov_b32 v{D+i}, 0",w=[D+i])
Vv(f"v_mov_b32 v47, {slot(16)}",w=[47]); e.raw(f"ds_write_b128 v47, v[{D}:{D+3}] offset:0"); e.raw("s_waitcnt lgkmcnt(0)")
barrier()
stamp(11)
reduce_ps("L_r9",4,43,49,4096,104,ACC,pre=True)
for i in range(8): Vv(f"v_add_f32_dpp v{ACC+i}, v{ACC+i}, v{ACC+i} row_ror:8 row_mask:0xf bank_mask:0xf",w=[ACC+i],r=[ACC+i],dpp=True)
for op in ("v_permlane16_swap_b32","v_permlane32_swap_b32"):
    for i in range(8): Vv(f"v_mov_b32 v{D+4+i}, v{ACC+i}",w=[D+4+i],r=[ACC+i])
    for i in range(8): Vv(f"{op} v{ACC+i}, v{D+4+i}",w=[ACC+i,D+4+i],r=[ACC+i,D+4+i],perm=True)
    for i in range(8): Vv(f"v_add_f32 v{ACC+i}, v{ACC+i}, v{D+4+i}",w=[ACC+i],r=[ACC+i,D+4+i])
for i in range(4): Vv(f"v_cvt_pk_bf16_f32 v{D+12+i}, v{ACC+2*i}, v{ACC+2*i+1}",w=[D+12+i],r=[ACC+2*i,ACC+2*i+1])
S("s_mov_b64 exec, 0xff")
e.vmem(f"buffer_store_dwordx4 v[{D+12}:{D+15}], v44, {srd(OUT)}, s52 offen offset:1024","o9",r=[44],store=R(D+12,4))
S("s_mov_b64 exec, -1")
e.label("L_no9"); e.reset_haz()
S("s_cmp_lt_u32 s9, 2"); S(f"s_cselect_b32 s45, 1, {opt['TB']}")
S("s_mov_b32 s94, 0")
e.label("L_wB")
S("s_sleep 1")
e.raw(f"ds_read_b128 v[{D}:{D+3}], v47 offset:0"); e.raw("s_waitcnt lgkmcnt(0)")
e.raw(f"v_min3_u32 v46, v{D}, v{D+1}, v{D+2}"); e.raw(f"v_min_u32 v46, v46, v{D+3}")
e.raw("v_cmp_gt_u32 vcc, s45, v46"); S("s_cbranch_vccz L_goA")
S("s_add_u32 s94, s94, 1"); S(f"s_cmp_lt_u32 s94, {TMO*8}"); S("s_cbranch_scc1 L_wB")
e.label("L_goA")
stamp(12)
reduce("L_rm",8,22,48,1024,D+16,ACC)
for i in range(4): Vv(f"v_cvt_pk_bf16_f32 v{D+i}, v{ACC+2*i}, v{ACC+2*i+1}",w=[D+i],r=[ACC+2*i,ACC+2*i+1])
e.vmem(f"buffer_store_dwordx4 v[{D}:{D+3}], v45, {srd(OUT)}, s55 offen","om",r=[45],store=R(D,4))
e.label("L_ldone"); e.reset_haz()
if STAMP:
    stamp(13); e.wait_all(lds=True,vm=True)
    S(f"s_cmp_lg_u32 s9, {opt['SW']}"); S("s_cbranch_scc1 L_end")
    Vv("v_writelane_b32 v1, s56, 0",w=[1]); Vv("v_writelane_b32 v1, s57, 1",w=[1])
    for i in range(28): Vv(f"v_writelane_b32 v1, s{60+i}, {2+i}",w=[1])
    Vv(f"v_writelane_b32 v1, s94, 44",w=[1]); Vv("v_lshlrev_b32 v23, 2, v0",w=[23],r=[0])
    S("s_lshl_b32 s44, s2, 8"); S(f"s_add_u32 s44, s44, {STB}"); S("s_mov_b32 exec_lo, -1"); S("s_mov_b32 exec_hi, 0xffff")
    e.vmem(f"buffer_store_dword v1, v23, {srd(WS)}, s44 offen","x",r=[1,23])
e.raw("s_endpgm")

e.label("L_compute"); e.reset_haz(); e.lds=[]; e.vm=[]
aR=R(2,4); aT=R(6,4); aT9=R(10,2); vL16=12; vAX=13; vZ=14; vI=15; vAY=248
T=16; Rdb=32; Rbig=40; accG=72; outA=136; pk=200; Pown=232; Pq=240
if opt["PRIO"]: S(f"s_setprio {opt['PRIO']}")
decode2()
S(f"s_mov_b32 s{DBG+2}, 256"); S(f"s_mov_b32 s{DBG+3}, 0x00020000")
Vv("v_and_b32 v14, 31, v0",w=[14],r=[0]); Vv("v_lshrrev_b32 v15, 5, v0",w=[15],r=[0])
Vv("v_lshlrev_b32 v12, 4, v0",w=[12],r=[0])
Vv("v_bfe_u32 v16, v0, 1, 3",w=[16],r=[0]); Vv("v_xor_b32 v16, v16, v15",w=[16],r=[16,15]); Vv("v_lshlrev_b32 v16, 4, v16",w=[16],r=[16])
Vv("v_lshl_or_b32 v16, v14, 7, v16",w=[16],r=[16,14])
S("s_lshl_b32 s44, s9, 12")
Vv("v_add_u32 v2, s44, v16",w=[2],r=[16])
S(f"s_add_u32 s44, s44, {AUXA}"); Vv("v_add_u32 v13, s44, v12",w=[13],r=[12])
S("s_lshl_b32 s44, s9, 11"); S(f"s_add_u32 s44, s44, {AUXA}"); Vv(f"v_add_u32 v{vAY}, s44, v12",w=[vAY],r=[12])
for ks in range(1,4): Vv(f"v_xor_b32 v{2+ks}, {32*ks}, v2",w=[2+ks],r=[2])
Vv("v_bfe_u32 v16, v0, 2, 2",w=[16],r=[0])
Vv("v_and_b32 v17, 1, v0",w=[17],r=[0]); Vv("v_bfe_u32 v18, v0, 1, 1",w=[18],r=[0])
Vv("v_lshlrev_b32 v17, 4, v17",w=[17],r=[17]); Vv("v_lshl_or_b32 v17, v18, 3, v17",w=[17],r=[17,18])
Vv("v_bfe_u32 v18, v0, 4, 1",w=[18],r=[0]); Vv("v_lshl_or_b32 v17, v18, 5, v17",w=[17],r=[17,18])
Vv("v_lshl_or_b32 v18, v15, 3, v16",w=[18],r=[15,16])
Vv("v_lshl_or_b32 v19, v18, 8, v17",w=[19],r=[18,17]); Vv("v_lshl_or_b32 v19, v16, 6, v19",w=[19],r=[16,19])
Vv("v_add_u32 v6, 0x4000, v19",w=[6],r=[19])
for t in range(1,4): Vv(f"v_xor_b32 v{6+t}, {64*t}, v6",w=[6+t],r=[6])
Vv("v_lshl_or_b32 v19, v18, 7, v17",w=[19],r=[18,17]); Vv("v_lshrrev_b32 v16, 1, v16",w=[16],r=[16]); Vv("v_lshl_or_b32 v19, v16, 6, v19",w=[19],r=[16,19])
Vv(f"v_add_u32 v10, {slot(12)}, v19",w=[10],r=[19]); Vv("v_xor_b32 v11, 64, v10",w=[11],r=[10])
Vv("v_mov_b32 v14, 0",w=[14]); Vv("v_mov_b32 v15, 1",w=[15])
S("s_lshl_b32 s44, s9, 16"); S("s_add_u32 s51, s48, s44"); S("s_lshl_b32 s44, s7, 10"); S("s_add_u32 s51, s51, s44")
cval=struct.unpack("<I",struct.pack("<f",(128**-0.5)*math.log2(math.e)))[0]
S(f"s_mov_b32 s53, {cval:#x}")
S("s_lshl_b32 s54, s47, 7"); S(f"s_add_u32 s54, s54, {CNT}")
S("s_lshl_b32 s59, s47, 5")
Vv("v_mov_b32 v249, 0x10001",w=[249])
e.wait_all(lds=True)
e.vmem(f"buffer_load_dword v250, v{vZ}, {srd(WS)}, s54 offen sc1","snap",w=[250],r=[vZ])
e.wait_all(vm=True)
mk_tags(250)
def cadd(sr,so,tag="cnt",count=True):
    S("s_mov_b64 exec, 1")
    e.vmem(f"buffer_atomic_add v{vI}, v{vZ}, {srd(sr)}, s{so} offen sc1",tag,r=[vI,vZ],count=count)
    S("s_mov_b64 exec, -1")
def adv(r,s,dyn):
    if dyn: Vv(f"v_add_u32 v{r}, s50, v{r}",w=[r],r=[r]); return
    d=slot(s)-slot(s-1)
    if d>=0: Vv(f"v_add_u32 v{r}, {d}, v{r}",w=[r],r=[r])
    else: Vv(f"v_subrev_u32 v{r}, {-d}, v{r}",w=[r],r=[r])
def Rreg(s,ks):
    if s in (10,11): return Rbig+16*(s-10)+4*ks
    return Rdb+4*(ks&1)
def rd_R(dst,ks,off,tag):
    e.ds(f"ds_read_b128 v[{dst}:{dst+3}], v{aR[ks]} offset:{off}",tag,w=R(dst,4),r=[aR[ks]])
def rd_T(dst,a,off0,off1,tag):
    e.ds(f"ds_read_b64_tr_b16 v[{dst}:{dst+1}], v{a} offset:{off0}",tag,w=R(dst,2),r=[a])
    e.ds(f"ds_read_b64_tr_b16 v[{dst+2}:{dst+3}], v{a} offset:{off1}",tag,w=R(dst+2,2),r=[a])
def reads_for(s,ks):
    k=kind(s)
    if k in("P1","P2"):
        return (lambda: rd_R(Rreg(s,ks),ks,0,("R",s,ks)),
                [(lambda t=t: rd_T(T+4*t,aT[t],ks*4096,ks*4096+1024,("T",s,ks,t))) for t in range(4)])
    if k=="V3": return (lambda: None,[(lambda: None)]*4)
    if k=="K":
        def two(t):
            for kk in (2*t,2*t+1): rd_R(Rbig+4*kk,kk%4,(kk//4)*16384,("K",kk))
        return (lambda: None,[(lambda t=t: two(t)) for t in range(4)])
    return (lambda: None,
            [(lambda t=t: rd_T(T+4*t,aT9[t%2],(2*ks+t//2)*2048,(2*ks+t//2)*2048+512,("T",s,ks,t))) for t in range(4)])
def cvt_tile(src,dst):
    for i in range(8):
        Vv(f"v_cvt_pk_bf16_f32 v{dst+i}, v{src+2*i}, v{src+2*i+1}",w=[dst+i],r=[src+2*i,src+2*i+1])
def stage(s,pre={},post={},atbar=None,nxt=True,dyn=False):
    k=kind(s)
    for ks in range(4):
        if ks<3:
            nr,nt=reads_for(s,ks+1); nr()
        elif nxt: nr,nt=reads_for(s+1,0)
        else: nr,nt=(lambda:None),[(lambda:None)]*4
        for t in range(4):
            for f in pre.get((ks,t),[]): f()
            e.need(lds=[("T",s,ks,t),("R",s,ks)])
            if k=="P1":   e.mfma(accG+16*t,T+4*t,Rreg(s,ks),None if (s==0 and ks==0) else accG+16*t)
            elif k=="P2":
                first=(ks==0 and (s in (10,13,15,17)))
                e.mfma(accG+16*t,Rreg(s,ks),T+4*t,None if first else accG+16*t)
            else:
                kk=2*ks+t//2; d=accG+16*(t%2)
                e.mfma(d,Rbig+4*kk,T+4*t,None if kk==0 else d)
            if ks==3 and t==0 and nxt:
                if atbar and atbar[0]: atbar[0]()
                barrier()
                if atbar and atbar[1]: atbar[1]()
                nr()
            nt[t]()
            if nxt and ks==2: adv(aT[t],s+1,dyn); adv(aR[t],s+1,dyn)
            for f in post.get((ks,t),[]): f()
def PM(t,q,P,first=False,dst=None,tag=None):
    def f():
        if tag: e.need(lds=[tag])
        d=(outA+16*t) if dst is None else dst
        e.mfma(d,pk+8*t+4*q,P+4*q,None if (first and q==0) else d)
    return f
barrier()
nr,nt=reads_for(0,0); nr()
for t in range(4): nt[t]()
def grp_add():
    S("s_cmp_lg_u32 s9, 0"); S("s_cbranch_scc1 L_nga"); cadd(DBG,59,count=False); e.label("L_nga")
stage(0,post={(3,3):[grp_add]} if SYNC else {})
if opt["LOOP"]:
    S(f"s_mov_b32 s52, {slot(1)}"); S("s_mov_b32 s55, 7")
    e.label("L_cloop")
    S("s_add_u32 s50, s52, 0x8000"); S("s_and_b32 s45, s50, 0x1ffff"); S("s_sub_u32 s50, s45, s52"); S("s_mov_b32 s52, s45")
    q0=list(e.lds)
    stage(1,dyn=True)
    S("s_sub_u32 s55, s55, 1"); S("s_cmp_lg_u32 s55, 0"); S("s_cbranch_scc1 L_cloop")
    ren=lambda q,a,b: [tuple(b if (i==1 and x==a) else x for i,x in enumerate(t)) for t in q]
    assert ren(q0,1,2)==e.lds,(q0,e.lds)
    e.lds=ren(e.lds,2,8)
    stage(8)
else:
    for s in range(1,9): stage(s)
Sx=outA; tm=outA+16; tm2=outA+17; E=outA+32
for t in range(4):
    cvt_tile(accG+16*t,pk+8*t)
    for kk in (2*t,2*t+1):
        e.need(lds=[("K",kk)])
        e.mfma(Sx,Rbig+4*kk,pk+4*kk,None if kk==0 else Sx)
for r in aR+aT: adv(r,10,False)
Vv(f"v_max3_f32 v{tm}, v{Sx}, v{Sx+1}, v{Sx+2}",w=[tm],r=[Sx,Sx+1,Sx+2])
Vv(f"v_max3_f32 v{tm2}, v{Sx+3}, v{Sx+4}, v{Sx+5}",w=[tm2],r=[Sx+3,Sx+4,Sx+5])
for i,d in ((6,tm),(8,tm2),(10,tm),(12,tm2)):
    Vv(f"v_max3_f32 v{d}, v{d}, v{Sx+i}, v{Sx+i+1}",w=[d],r=[d,Sx+i,Sx+i+1])
Vv(f"v_max3_f32 v{tm}, v{tm}, v{Sx+14}, v{Sx+15}",w=[tm],r=[tm,Sx+14,Sx+15])
Vv(f"v_max_f32 v{tm}, v{tm}, v{tm2}",w=[tm],r=[tm,tm2])
Vv(f"v_mov_b32 v{tm2}, v{tm}",w=[tm2],r=[tm])
Vv(f"v_permlane32_swap_b32 v{tm}, v{tm2}",w=[tm,tm2],r=[tm,tm2],perm=True)
Vv(f"v_max_f32 v{tm}, v{tm}, v{tm2}",w=[tm],r=[tm,tm2])
Vv(f"v_mul_f32 v{tm}, s53, v{tm}",w=[tm],r=[tm])
for i in range(16): Vv(f"v_fma_f32 v{E+i}, v{Sx+i}, s53, -v{tm}",w=[E+i],r=[Sx+i,tm])
for i in range(16): Vv(f"v_exp_f32 v{E+i}, v{E+i}",w=[E+i],r=[E+i],trans=True)
sm=outA+18
for i in range(4): Vv(f"v_add_f32 v{sm+i}, v{E+i}, v{E+4+i}",w=[sm+i],r=[E+i,E+4+i])
for j in (8,12):
    for i in range(4): Vv(f"v_add_f32 v{sm+i}, v{sm+i}, v{E+j+i}",w=[sm+i],r=[sm+i,E+j+i])
Vv(f"v_add_f32 v{sm}, v{sm}, v{sm+1}",w=[sm],r=[sm,sm+1]); Vv(f"v_add_f32 v{sm+2}, v{sm+2}, v{sm+3}",w=[sm+2],r=[sm+2,sm+3])
Vv(f"v_add_f32 v{sm}, v{sm}, v{sm+2}",w=[sm],r=[sm,sm+2])
Vv(f"v_mov_b32 v{tm2}, v{sm}",w=[tm2],r=[sm])
Vv(f"v_permlane32_swap_b32 v{sm}, v{tm2}",w=[sm,tm2],r=[sm,tm2],perm=True)
Vv(f"v_add_f32 v{sm}, v{sm}, v{tm2}",w=[sm],r=[sm,tm2])
Vv(f"v_rcp_f32 v{sm}, v{sm}",w=[sm],r=[sm],trans=True)
for i in range(16): Vv(f"v_mul_f32 v{E+i}, v{E+i}, v{sm}",w=[E+i],r=[E+i,sm])
cvt_tile(E,Pown)
for q in range(2): e.ds(f"ds_write_b128 v{vAX}, v[{Pown+4*q}:{Pown+4*q+3}] offset:{1024*q}","pw",r=[vAX]+R(Pown+4*q,4))
if STAMP: S("s_memrealtime s[60:61]")
e.wait_all(lds=True)
barrier()
nr,nt=reads_for(10,0); nr()
for t in range(4): nt[t]()
stage(10)
stage(11)
C=lambda t: (lambda: cvt_tile(accG+16*t,pk+8*t))
stage(12,pre={(0,0):[C(0)],(0,1):[C(1)]},
      post={(0,2):[C(2)],(0,3):[C(3)],(1,0):[PM(0,0,Pown,True),PM(0,1,Pown)],(1,2):[PM(1,0,Pown,True),PM(1,1,Pown)],
            (2,0):[PM(2,0,Pown,True),PM(2,1,Pown)],(2,2):[PM(3,0,Pown,True),PM(3,1,Pown)]})
def pub9(t9):
    def f():
        cvt_tile(Rbig+16*t9,Rbig+16*t9)
        for q in range(2):
            r0=Rbig+16*t9+4*q
            e.ds(f"ds_write_b128 v{vAX}, v[{r0}:{r0+3}] offset:{2048*t9+1024*q}","o9w",r=[vAX]+R(r0,4))
    return f
stage(13,pre={(0,0):[C(0)],(0,1):[C(1)]},
      post={(0,3):[PM(0,0,Pown,True,dst=Rbig),PM(0,1,Pown,dst=Rbig)],(1,0):[PM(1,0,Pown,True,dst=Rbig+16),PM(1,1,Pown,dst=Rbig+16)],
            (2,0):[pub9(0)],(2,2):[pub9(1)]},
      atbar=(lambda: e.need(lds=["o9w"]),None))
stage(14)
def prd(j,P):
    for q in range(2):
        off=(16384+(j-1)*8192 if j<3 else 0)+1024*q
        e.ds(f"ds_read_b128 v[{P+4*q}:{P+4*q+3}], v{vAY} offset:{off}",("P",j),w=R(P+4*q,4),r=[vAY])
aR2=aT
def vadd(dst,src,d):
    if d>=0: Vv(f"v_add_u32 v{dst}, {d}, v{src}",w=[dst],r=[src])
    else: Vv(f"v_subrev_u32 v{dst}, {-d}, v{src}",w=[dst],r=[src])
for i in range(4): vadd(aR2[i],aR[i],slot(17)-slot(15))
assert slot(16)==slot(12)
RB=[Rdb,Rdb+4,250]; P1r=Pq; P2r=Pown; P3r=Rbig
def prog(k):
    Vv(f"v_mov_b32 v13, {k}",w=[13]); e.ds(f"ds_write_b32 v254, v13 offset:0","pg",r=[13,254])
S("s_lshl_b32 s44, s9, 2"); S(f"s_add_u32 s44, s44, {slot(16)}"); Vv("v_mov_b32 v254, s44",w=[254])
def spec(m):
    blk=m//16; kk=(m%16)//2; t9=m%2
    return blk,kk,t9,(blk*8+kk)
def rds(m):
    blk,kk,t9,g=spec(m)
    if t9==0:
        a=(aR if blk%2==0 else aR2)[kk%4]; dst=RB[g%3]
        e.ds(f"ds_read_b128 v[{dst}:{dst+3}], v{a} offset:{(kk//4)*16384}",("R3",g),w=R(dst,4),r=[a])
    o=(blk%2)*16384+kk*2048
    rd_T(T+4*(m%4),aT9[t9],o,o+512,("T3",m))
def pmx(t,src,P,tag):
    def f():
        for q in range(2):
            e.need(lds=[tag]); e.mfma(outA+16*t,src+4*q,P+4*q,outA+16*t)
    return f
def cv(src,dst): return lambda: cvt_tile(src,dst)
def fin(t,stg):
    def f():
        cvt_tile(outA+16*t,stg)
        for i in range(8): Vv(f"v_bfi_b32 v{stg+i}, v249, s{88+i%4}, v{stg+i}",w=[stg+i],r=[stg+i,249])
        for q in range(2):
            S(f"s_add_u32 s44, s51, {(t&1)*32768+((t>>1)*2+q)*8192}")
            r0=stg+4*q
            e.vmem(f"buffer_store_dwordx4 v[{r0}:{r0+3}], v{vL16}, {srd(WS)}, s44 offen sc1",("Mst",t>>1),r=[vL16],store=R(r0,4))
    return f
def mv9():
    for r in aT9: vadd(r,r,slot(18)-slot(16))
cvt_tile(accG,Rbig); cvt_tile(accG+16,Rbig+8)
barrier()
for m in range(4): rds(m)
cvt_tile(accG+32,Rbig+16); cvt_tile(accG+48,Rbig+24)
before={12:[barrier,lambda: prd(1,P1r),lambda: prd(2,P2r)],28:[mv9,barrier]}
after={16:[cv(accG,pk)],17:[cv(accG+16,pk+8)],18:[pmx(0,Rbig,P1r,("P",1))],19:[pmx(1,Rbig+8,P1r,("P",1)),lambda: prd(3,P3r)],
       21:[pmx(0,pk,P2r,("P",2))],23:[pmx(1,pk+8,P2r,("P",2))],
       32:[cv(accG+32,pk+16),barrier],33:[cv(accG+48,pk+24)],34:[pmx(0,pk+16,P3r,("P",3))],35:[pmx(1,pk+24,P3r,("P",3))],
       38:[fin(0,pk)],40:[fin(1,pk+8)],opt['PA']:[lambda: e.need(vm=[('Mst',0)]),lambda: prog(1)],
       42:[pmx(2,Rbig+16,P1r,("P",1))],44:[pmx(3,Rbig+24,P1r,("P",1))],
       48:[cv(accG,pk+16)],49:[cv(accG+16,pk+24)],51:[pmx(2,pk+16,P2r,("P",2))],53:[pmx(3,pk+24,P2r,("P",2))]}
for m in range(64):
    blk,kk,t9,g=spec(m)
    e.need(lds=[("T3",m),("R3",g)])
    d=accG+32*(blk%2)+16*t9
    e.mfma(d,RB[g%3],T+4*(m%4),None if kk==0 else d)
    for f in before.get(m,[]): f()
    if m+4<64: rds(m+4)
    for f in after.get(m,[]): f()
cvt_tile(accG+32,pk); pmx(2,pk,P3r,("P",3))()
cvt_tile(accG+48,pk+8); pmx(3,pk+8,P3r,("P",3))()
fin(2,accG)(); fin(3,accG+8)()
prog(2)
if STAMP: S("s_memrealtime s[62:63]")
e.wait_all(vm=True)
prog(3)
if STAMP: e.wait_all(vm=True); S("s_memrealtime s[64:65]")
if STAMP:
    e.wait_all(lds=True)
    S("s_cmp_lg_u32 s9, 0"); S("s_cbranch_scc1 L_end")
    Vv("v_writelane_b32 v1, s56, 0",w=[1]); Vv("v_writelane_b32 v1, s57, 1",w=[1])
    for i in range(6): Vv(f"v_writelane_b32 v1, s{60+i}, {2+i}",w=[1])
    Vv("v_lshlrev_b32 v2, 2, v0",w=[2],r=[0])
    S("s_lshl_b32 s44, s2, 8"); S(f"s_add_u32 s44, s44, {STB+192}"); S("s_mov_b64 exec, 0xff")
    e.vmem(f"buffer_store_dword v1, v2, {srd(WS)}, s44 offen","x",r=[1,2])
e.label("L_end")
e.raw("s_endpgm")
bot=f'''
.section .rodata,"a"
.p2align 6
.amdhsa_kernel {KN}
  .amdhsa_next_free_vgpr 256
  .amdhsa_next_free_sgpr 102
  .amdhsa_accum_offset 256
  .amdhsa_group_segment_fixed_size 0
  .amdhsa_kernarg_size 104
  .amdhsa_user_sgpr_count 2
  .amdhsa_user_sgpr_kernarg_segment_ptr 1
  .amdhsa_system_sgpr_workgroup_id_x 1
  .amdhsa_float_denorm_mode_32 3
.end_amdhsa_kernel
'''
sys.stdout.write(top+e.text()+bot)
sys.stderr.write(f"nops inserted: {e.nops}\n")
```

```python
import sys, math, struct
from emit import Emit, R
NAME="concat_heads__gqa_block_cached__mha_block_cached__near_ridge"
opt=dict(RING=4, ROT1="full", STAMP=0, PRIO=0, NODMA=0, NOCOMP=0, NOSYNC=0, FIN="in", ST="sc1", DBGT=0, FAKE16=0, OST="")
for a in sys.argv[1:]:
    k,v=a.split("="); opt[k]=int(v) if v.lstrip("-").isdigit() else v
RING=opt["RING"]; STAMP=opt["STAMP"]; K2=opt["FIN"]=="k2"; SYNC=not opt["NOSYNC"]
PST="" if K2 and opt["ST"]=="plain" else " sc1"
NST=19
INB=0x400000; IN9=0xC00000; CNT=0x200000; STB=0xC800000
SLOT=32768
def slot(s): return (s%RING)*SLOT
X,K,V,WQ,WO,OUT,DBG,WS=12,16,20,24,28,32,36,40
def srd(b): return f"s[{b}:{b+3}]"
e=Emit()
if opt["NOCOMP"]:
    e.mfma=lambda *a,**k: None
    e.ds=lambda *a,**k: None
S=e.salu; Vv=e.valu
if opt["FAKE16"]:
    _m=e.mfma
    def fake(d,a,b,c=None):
        n=len(e.lines); _m(d,a,b,c)
        e.lines.pop()
        for k in (0,8):
            cs=f"v[{d+k}:{d+k+3}]" if c is not None else "0"
            e.lines.append(f"v_mfma_f32_16x16x32_bf16 v[{d+k}:{d+k+3}], v[{a}:{a+3}], v[{b}:{b+3}], {cs}")
    e.mfma=fake
KN=NAME+"_kernel"
hdr=open("cdna_kernels/"+NAME+".s.ref").read().split("; Override launch")[0]
if K2: top=hdr+f"; @launch kernel={KN} grid=(256,1,1) block=(512,1,1) lds={RING*SLOT}\n; @launch kernel=red_kernel grid=(256,1,1) block=(512,1,1) lds=0\n"
else: top=hdr+f"; @launch grid=(256,1,1) block=(512,1,1) lds={RING*SLOT}\n"
top+=f'.amdgcn_target "amdgcn-amd-amdhsa--gfx950"\n.text\n.globl {KN}\n.p2align 8\n.type {KN},@function\n{KN}:\n'
def barrier(): e.raw("s_barrier")
def kind(s):
    if s<9: return "P1"
    if s==9: return "K"
    if s==12: return "W9"
    return "P2"

def decode(full=True):
    S("s_bfe_u32 s5, s2, 0x20003"); S("s_lshr_b32 s46, s2, 5")
    S("s_and_b32 s6, s2, 3"); S("s_lshl_b32 s6, s6, 3"); S("s_add_u32 s6, s6, s46")
    Vv("v_readfirstlane_b32 s3, v1",r=[1],rfl=True,swr=["s3"])
    Vv("v_and_b32 v0, 63, v0",w=[0],r=[0])
    S("s_and_b32 s9, s3, 3")
def decode2():
    S("s_lshr_b32 s7, s6, 2"); S("s_and_b32 s8, s6, 3")
    S("s_lshl_b32 s47, s4, 2"); S("s_add_u32 s47, s47, s5")
    S("s_add_u32 s99, s8, s5"); S("s_and_b32 s99, s99, 3")
    S("s_lshl_b32 s48, s47, 2"); S("s_add_u32 s48, s48, s99"); S("s_lshl_b32 s48, s48, 18"); S(f"s_add_u32 s48, s48, {INB}")
    S("s_lshl_b32 s49, s47, 19"); S(f"s_add_u32 s49, s49, {IN9}")
S("s_cmp_ge_u32 s2, 256"); S("s_cbranch_scc1 L_end")
if STAMP or opt["DBGT"]: S("s_memrealtime s[56:57]")
S("s_bfe_u32 s4, s2, 0x10002")
S("s_mul_i32 s44, s4, 40"); S("s_add_u32 s44, s0, s44"); S("s_addc_u32 s45, s1, 0")
for d,off in ((X,0),(WQ,24),(K,8),(V,16),(WO,32)): S(f"s_load_dwordx2 s[{d}:{d+1}], s[44:45], {off}")
for d,off in ((WS,96),(OUT,80),(DBG,88)): S(f"s_load_dwordx2 s[{d}:{d+1}], s[0:1], {off}")
Vv("v_lshrrev_b32 v1, 6, v0",w=[1],r=[0])
decode()
for d,n in ((X,512*1152),(WQ,576*8192),(WS,0x10000000)): S(f"s_mov_b32 s{d+2}, {n}"); S(f"s_mov_b32 s{d+3}, 0x00020000")
S("s_cmp_lt_u32 s3, 4"); S("s_cbranch_scc1 L_compute")

vX,vV,vQ,vO,v9=R(2,4),R(6,4),R(10,4),R(14,4),R(18,4)
vL16=22; vL4=23; vSA=24; vSN=25; vCU=26; vEX=27
Vv("v_lshrrev_b32 v28, 3, v0",w=[28],r=[0]); Vv("v_and_b32 v29, 7, v0",w=[29],r=[0])
Vv("v_lshrrev_b32 v30, 4, v0",w=[30],r=[0]); Vv("v_and_b32 v31, 15, v0",w=[31],r=[0])
S("s_movk_i32 s45, 1152")
Vv("v_xor_b32 v32, v29, v30",w=[32],r=[29,30]); Vv("v_lshlrev_b32 v32, 4, v32",w=[32],r=[32])
Vv("v_mad_u32_u24 v2, v28, s45, v32",w=[2],r=[28,32])
Vv("v_lshlrev_b32 v35, 2, v30",w=[35],r=[30]); Vv("v_xor_b32 v35, v35, v31",w=[35],r=[35,31]); Vv("v_lshlrev_b32 v35, 4, v35",w=[35],r=[35])
Vv("v_lshl_or_b32 v10, v30, 13, v35",w=[10],r=[30,35])
Vv("v_xor_b32 v39, 64, v2",w=[39],r=[2])
for j in range(1,4):
    Vv(f"v_add_u32 v{vX[j]}, {j*(9216-1024)}, v{2 if j%2==0 else 39}",w=[vX[j]],r=[2,39])
    Vv(f"v_add_u32 v{vQ[j]}, {j*(32768-1024)}, v10",w=[vQ[j]],r=[10])
S("s_lshl_b32 s52, s5, 2"); S("s_add_u32 s52, s52, s9"); S("s_mul_i32 s50, s52, 36864")
S("s_lshl_b32 s51, s9, 17"); S("s_lshl_b32 s44, s6, 8"); S("s_add_u32 s51, s51, s44")
S("s_lshl_b32 s53, s9, 12")
if opt["ROT1"]=="full":
    S("s_lshl_b32 s54, s5, 1"); S("s_add_u32 s54, s54, s46"); S("s_cmp_ge_u32 s54, 9"); S("s_cselect_b32 s44, 9, 0"); S("s_sub_u32 s54, s54, s44")
elif opt["ROT1"]=="none": S("s_mov_b32 s54, 0")
elif opt["ROT1"]=="half":
    S("s_lshr_b32 s54, s5, 1"); S("s_lshl_b32 s54, s54, 2"); S("s_lshr_b32 s44, s46, 1"); S("s_add_u32 s54, s54, s44")
e.wait_all(lds=True)
def dma(v,sr,so,j,tag):
    if opt["NODMA"]: return
    e.vmem(f"buffer_load_dwordx4 v{v}, {srd(sr)}, s{so} offen offset:{1024*j} lds",tag,r=[v],dma=True)
def setm0(off): S(f"s_add_u32 m0, s53, {off}",m0=True)
def issue(s):
    k=kind(s); tag=("L",s)
    if k=="P1":
        S("s_lshl_b32 s44, s54, 7"); setm0(slot(s)); S("s_add_u32 s44, s44, s50")
        S("s_lshl_b32 s45, s54, 19"); S("s_add_u32 s45, s45, s51")
        for j in range(4): dma(vX[j],X,44,j,tag)
        setm0(slot(s)+16384)
        S("s_add_u32 s54, s54, 1")
        for j in range(4): dma(vQ[j],WQ,45,j,tag)
        S("s_cmp_eq_u32 s54, 9"); S("s_cselect_b32 s54, 0, s54")
    elif k=="K":
        S("s_lshr_b32 s44, s6, s10"); S("s_lshl_b32 s44, s44, 13"); S("s_add_u32 s44, s44, s52"); setm0(slot(s)); S("s_add_u32 s45, s44, 128")
        for j in range(4): dma(vV[j],K,44,j,tag)
        setm0(slot(s)+16384); e.nop(1)
        for j in range(4): dma(vV[j],K,45,j,tag)
    elif k=="W9":
        S("s_lshl_b32 s44, s6, 2"); S("s_add_u32 s44, s44, s9"); S(f"s_mul_i32 s44, s44, {32*1152}"); setm0(slot(s)); S("s_add_u32 s44, s44, 1024")
        for j in range(4): dma(v9[j],WO,44,j,tag)
    else:
        js,half={10:(0,0),11:(0,1),13:(1,0),14:(1,1),15:(2,0),16:(2,1),17:(3,0),18:(3,1)}[s]
        S(f"s_add_u32 s45, s8, {js}"); S("s_and_b32 s45, s45, 3"); S("s_and_b32 s44, s6, 28"); S("s_add_u32 s45, s45, s44")
        S("s_lshr_b32 s44, s45, s10"); S("s_lshl_b32 s44, s44, 13"); S("s_add_u32 s44, s44, s52")
        if half: S("s_add_u32 s44, s44, 128")
        setm0(slot(s))
        S(f"s_mul_i32 s45, s45, {128*1152}"); S("s_add_u32 s45, s45, s55")
        for j in range(4): dma(vV[j],V,44,j,tag)
        setm0(slot(s)+16384)
        if half: S(f"s_add_u32 s45, s45, {64*1152}")
        else: e.nop(1)
        for j in range(4): dma(vO[j],WO,45,j,tag)
issue(0)
decode2()
S("s_lshl_b32 s44, s47, 3"); S("s_add_u32 s44, s44, s7"); S("s_lshl_b32 s44, s44, 7"); S(f"s_add_u32 s44, s44, {CNT}")
Vv(f"v_mov_b32 v{vSA}, s44",w=[vSA]); Vv(f"v_mov_b32 v{vEX}, 16",w=[vEX])
S("s_lshl_b32 s44, s47, 2"); S("s_add_u32 s44, s44, s99"); S("s_lshl_b32 s44, s44, 2"); S("s_lshr_b32 s45, s7, 1"); S("s_add_u32 s44, s44, s45"); S("s_lshl_b32 s44, s44, 7"); S(f"s_add_u32 s44, s44, {CNT+64*128}")
Vv(f"v_writelane_b32 v{vSA}, s44, 1",w=[vSA]); Vv(f"v_writelane_b32 v{vEX}, 8, 1",w=[vEX])
S("s_lshl_b32 s44, s47, 2"); S("s_lshr_b32 s45, s6, 3"); S("s_add_u32 s44, s44, s45"); S("s_lshl_b32 s44, s44, 7"); S(f"s_add_u32 s44, s44, {CNT+192*128}")
Vv(f"v_writelane_b32 v{vSA}, s44, 2",w=[vSA]); Vv(f"v_writelane_b32 v{vEX}, 32, 2",w=[vEX])
S("s_mov_b64 exec, 7")
e.vmem(f"buffer_load_dword v{vSN}, v{vSA}, {srd(WS)}, 0 offen sc1","snap",w=[vSN],r=[vSA])
S("s_mov_b64 exec, -1")
for s in range(1,RING-2): issue(s)
S("s_sub_u32 s10, 1, s4"); S("s_add_u32 s11, s4, 17")
for d,n in ((WO,576*8192),(OUT,512*2304),(DBG,256)): S(f"s_mov_b32 s{d+2}, {n}")
S(f"s_lshl_b32 s{K+2}, 0x200000, s4"); S(f"s_mov_b32 s{V+2}, s{K+2}")
for d in (K,V,WO,OUT,DBG): S(f"s_mov_b32 s{d+3}, 0x00020000")
S("s_movk_i32 s45, 1152")
Vv("v_lshl_or_b32 v6, v28, 8, v32",w=[6],r=[28,32]); Vv("v_xor_b32 v40, 64, v6",w=[40],r=[6])
Vv("v_mad_u32_u24 v14, v30, s45, v35",w=[14],r=[30,35])
Vv("v_and_b32 v38, 1, v30",w=[38],r=[30]); Vv("v_lshlrev_b32 v38, 2, v38",w=[38],r=[38]); Vv("v_xor_b32 v38, v38, v29",w=[38],r=[38,29]); Vv("v_lshlrev_b32 v38, 4, v38",w=[38],r=[38])
Vv("v_mad_u32_u24 v18, v28, s45, v38",w=[18],r=[28,38])
for j in range(1,4):
    Vv(f"v_add_u32 v{vV[j]}, {j*1024}, v{6 if j%2==0 else 40}",w=[vV[j]],r=[6,40])
    Vv(f"v_add_u32 v{vO[j]}, {j*(4608-1024)}, v14",w=[vO[j]],r=[14])
    Vv(f"v_add_u32 v{v9[j]}, {j*(9216-1024)}, v18",w=[v9[j]],r=[18])
Vv("v_lshlrev_b32 v22, 4, v0",w=[22],r=[0]); Vv("v_mov_b32 v23, 0",w=[23])
S("s_lshl_b32 s52, s52, s11")
S(f"s_mul_i32 s55, s9, {16*1152}"); S("s_lshl_b32 s44, s99, 8"); S("s_add_u32 s55, s55, s44")
S("s_lshl_b32 s59, s47, 5")
def stamp(i):
    if STAMP: S(f"s_mem{'real' if STAMP==1 else ''}time s[{58+2*i+2}:{59+2*i+2}]")
def poll(lbl,lane,first_loaded):
    S(f"s_mov_b64 exec, {1<<lane}"); S("s_mov_b32 s45, 0")
    if not first_loaded: S(f"s_branch {lbl}_ld")
    e.label(lbl)
    e.raw(f"v_sub_u32 v41, v{vCU}, v{vSN}"); e.raw(f"v_cmp_ne_u32 vcc, v41, v{vEX}")
    S(f"s_cbranch_vccz {lbl}_done")
    S("s_add_u32 s45, s45, 1"); S("s_cmp_ge_u32 s45, 0x20000"); S(f"s_cbranch_scc1 {lbl}_done")
    S("s_sleep 1")
    e.label(lbl+"_ld")
    e.raw(f"buffer_load_dword v{vCU}, v{vSA}, {srd(WS)}, 0 offen sc1"); e.raw("s_waitcnt vmcnt(0)")
    S(f"s_branch {lbl}")
    e.label(lbl+"_done"); S("s_mov_b64 exec, -1")
for s in range(NST):
    e.need(vm=[("L",s)]+(["snap"] if s==0 else []))
    if s==9 and SYNC:
        e.comment("group-ready check (loader 0): all 32 WGs of the group have taken their snapshots")
        S("s_cmp_lg_u32 s9, 0"); S("s_cbranch_scc1 L_gr_ok")
        S("s_mov_b64 exec, 1"); S("s_mov_b32 s45, 0")
        e.label("L_gr")
        e.raw("v_cmp_gt_u32 vcc, 32, v42"); S("s_cbranch_vccz L_gr_done")
        S("s_add_u32 s45, s45, 1"); S("s_cmp_ge_u32 s45, 0x20000"); S("s_cbranch_scc1 L_gr_done")
        S("s_sleep 2")
        e.raw(f"buffer_load_dword v42, v23, {srd(DBG)}, s59 offen sc1"); e.raw("s_waitcnt vmcnt(0)")
        S("s_branch L_gr")
        e.label("L_gr_done"); S("s_mov_b64 exec, -1")
        e.label("L_gr_ok")
    if s==14 and SYNC:
        S("s_cmp_lg_u32 s9, 0"); S("s_cbranch_scc1 L_p_ok")
        poll("L_pp",0,True)
        e.label("L_p_ok")
    barrier(); stamp(s)
    if s+RING-2==9 and SYNC:
        S("s_cmp_lg_u32 s9, 0"); S("s_cbranch_scc1 L_ngr"); S("s_mov_b64 exec, 1")
        e.vmem(f"buffer_load_dword v42, v23, {srd(DBG)}, s59 offen sc1","f",w=[42],r=[23],count=False)
        S("s_mov_b64 exec, -1"); e.label("L_ngr")
    if s==13 and SYNC:
        S("s_cmp_lg_u32 s9, 0"); S("s_cbranch_scc1 L_npp"); S("s_mov_b64 exec, 1")
        e.vmem(f"buffer_load_dword v{vCU}, v{vSA}, {srd(WS)}, 0 offen sc1","f",w=[vCU],r=[vSA],count=False)
        S("s_mov_b64 exec, -1"); e.label("L_npp")
    if s+RING-2<NST: issue(s+RING-2)

D=48; ACC=96
def red_loads(n,vaddr,sbase,step,dst,flags):
    for i in range(n):
        o=i*step
        S(f"s_add_u32 s44, s{sbase}, {o&~4095}")
        e.vmem(f"buffer_load_dwordx4 v[{dst+4*i}:{dst+4*i+3}], v{vaddr}, {srd(WS)}, s44 offen offset:{o&4095}{flags}",("D",dst,i),w=R(dst+4*i,4),r=[vaddr])
def red_acc(n,dst,acc):
    for i in range(8): Vv(f"v_mov_b32 v{acc+i}, 0",w=[acc+i])
    for i in range(n):
        e.need(vm=[("D",dst,i)])
        d=dst+4*i
        for c in range(4):
            Vv(f"v_dot2c_f32_bf16 v{acc+2*c}, s50, v{d+c}",w=[acc+2*c],r=[acc+2*c,d+c],dot=True)
            Vv(f"v_dot2c_f32_bf16 v{acc+2*c+1}, s51, v{d+c}",w=[acc+2*c+1],r=[acc+2*c+1,d+c],dot=True)
def red9_setup():
    Vv("v_lshrrev_b32 v28, 3, v0",w=[28],r=[0]); Vv("v_and_b32 v29, 7, v0",w=[29],r=[0])
    Vv("v_lshlrev_b32 v43, 9, v28",w=[43],r=[28]); Vv("v_lshl_or_b32 v43, v29, 4, v43",w=[43],r=[29,43])
    S("s_lshl_b32 s44, s6, 14"); S("s_add_u32 s49, s49, s44"); S("s_lshl_b32 s44, s9, 7"); S("s_add_u32 s49, s49, s44")
def red9_finish(dst,acc):
    for i in range(8): Vv(f"v_add_f32_dpp v{acc+i}, v{acc+i}, v{acc+i} row_ror:8 row_mask:0xf bank_mask:0xf",w=[acc+i],r=[acc+i],dpp=True)
    for op in ("v_permlane16_swap_b32","v_permlane32_swap_b32"):
        for i in range(8): Vv(f"v_mov_b32 v{dst+i}, v{acc+i}",w=[dst+i],r=[acc+i])
        for i in range(8): Vv(f"{op} v{acc+i}, v{dst+i}",w=[acc+i,dst+i],r=[acc+i,dst+i],perm=True)
        for i in range(8): Vv(f"v_add_f32 v{acc+i}, v{acc+i}, v{dst+i}",w=[acc+i],r=[acc+i,dst+i])
    for i in range(4): Vv(f"v_cvt_pk_bf16_f32 v{dst+8+i}, v{acc+2*i}, v{acc+2*i+1}",w=[dst+8+i],r=[acc+2*i,acc+2*i+1])
    S("s_lshl_b32 s44, s5, 2"); S("s_lshr_b32 s45, s6, 3"); S("s_add_u32 s44, s44, s45"); S("s_lshl_b32 s44, s44, 2"); S("s_add_u32 s44, s44, s9")
    S(f"s_mul_i32 s44, s44, {8*2304}"); S("s_mul_i32 s45, s4, 1152"); S("s_add_u32 s44, s44, s45"); S("s_and_b32 s45, s6, 7"); S("s_lshl_b32 s45, s45, 4"); S("s_add_u32 s44, s44, s45")
    S("s_movk_i32 s45, 2304")
    Vv("v_mul_u32_u24 v44, s45, v0",w=[44],r=[0])
    S("s_mov_b64 exec, 0xff")
    e.vmem(f"buffer_store_dwordx4 v[{dst+8}:{dst+11}], v44, {srd(OUT)}, s44 offen offset:1024"+opt["OST"].replace("+"," "),"o9",r=[44],store=R(dst+8,4))
    S("s_mov_b64 exec, -1")
def redm_setup():
    S("s_movk_i32 s45, 2304")
    Vv("v_lshlrev_b32 v22, 4, v0",w=[22],r=[0])
    Vv("v_and_b32 v45, 31, v0",w=[45],r=[0]); Vv("v_mul_u32_u24 v45, s45, v45",w=[45],r=[45]); Vv("v_lshrrev_b32 v46, 5, v0",w=[46],r=[0]); Vv("v_lshl_add_u32 v45, v46, 4, v45",w=[45],r=[45,46])
    S("s_lshl_b32 s44, s7, 15"); S("s_add_u32 s48, s48, s44"); S("s_lshl_b32 s44, s9, 13"); S("s_add_u32 s48, s48, s44")
    S("s_lshl_b32 s44, s5, 2"); S("s_lshr_b32 s45, s7, 1"); S("s_add_u32 s44, s44, s45"); S(f"s_mul_i32 s55, s44, {32*2304}")
    S("s_mul_i32 s45, s4, 1152"); S("s_add_u32 s55, s55, s45"); S("s_lshl_b32 s45, s99, 8"); S("s_add_u32 s55, s55, s45")
    S("s_and_b32 s45, s7, 1"); S("s_lshl_b32 s45, s45, 7"); S("s_add_u32 s55, s55, s45"); S("s_lshl_b32 s45, s9, 5"); S("s_add_u32 s55, s55, s45")
def redm_finish(dst,acc):
    for i in range(4): Vv(f"v_cvt_pk_bf16_f32 v{dst+i}, v{acc+2*i}, v{acc+2*i+1}",w=[dst+i],r=[acc+2*i,acc+2*i+1])
    e.vmem(f"buffer_store_dwordx4 v[{dst}:{dst+3}], v45, {srd(OUT)}, s55 offen"+opt["OST"].replace("+"," "),"om",r=[45],store=R(dst,4))
if not K2:
    e.comment("---- 9th line reduce, then main reduce")
    S("s_mov_b32 s50, 0x3f80"); S("s_mov_b32 s51, 0x3f800000")
    red9_setup(); redm_setup()
    if SYNC: poll("L_pn",2,False)
    e.reset_haz(); e.vm=[]
    red_loads(4,43,49,4096,D," sc1"); red_acc(4,D,ACC); red9_finish(D,ACC)
    stamp(19)
    if SYNC: poll("L_pf",1,False)
    e.reset_haz(); e.vm=[]
    red_loads(8,22,48,1024,D+16," sc1"); red_acc(8,D+16,ACC); redm_finish(D,ACC)
else: stamp(19)
if opt["DBGT"]:
    e.wait_all(vm=True); S("s_memrealtime s[100:101]"); e.wait_all(lds=True)
    S("s_not_b32 s56, s56"); Vv("v_mov_b32 v1, s56",w=[1]); Vv("v_mov_b32 v2, s100",w=[2]); Vv("v_mov_b32 v23, 0",w=[23]); S("s_mov_b64 exec, 1")
    e.raw(f"buffer_atomic_umax v1, v23, {srd(DBG)}, 0 offen offset:4 sc1"); e.raw(f"buffer_atomic_umax v2, v23, {srd(DBG)}, 0 offen offset:8 sc1")
if STAMP:
    S("s_memrealtime s[100:101]"); e.wait_all(lds=True,vm=True)
    S("s_cmp_lg_u32 s9, 0"); S("s_cbranch_scc1 L_end")
    Vv("v_writelane_b32 v1, s56, 0",w=[1]); Vv("v_writelane_b32 v1, s57, 1",w=[1])
    for i in range(40): Vv(f"v_writelane_b32 v1, s{60+i}, {2+i}",w=[1])
    Vv("v_writelane_b32 v1, s100, 42",w=[1]); Vv("v_writelane_b32 v1, s101, 43",w=[1])
    Vv(f"v_writelane_b32 v1, s45, 44",w=[1]); Vv("v_lshlrev_b32 v23, 2, v0",w=[23],r=[0])
    S("s_lshl_b32 s44, s2, 8"); S(f"s_add_u32 s44, s44, {STB}"); S("s_mov_b32 exec_lo, -1"); S("s_mov_b32 exec_hi, 0xffff")
    e.vmem(f"buffer_store_dword v1, v23, {srd(WS)}, s44 offen","x",r=[1,23])
e.raw("s_endpgm")

e.label("L_compute"); e.reset_haz(); e.lds=[]; e.vm=[]
aR=R(2,4); aT=R(6,4); aT9=R(10,2); vL16=12; vO9=13; vZ=14; vI=15
T=16; Rdb=32; Rbig=40; accG=72; outA=136; pk=200; Pown=232; o9p=240
if opt["PRIO"]: S("s_setprio 2")
decode2()
S(f"s_mov_b32 s{DBG+2}, 256"); S(f"s_mov_b32 s{DBG+3}, 0x00020000")
Vv("v_and_b32 v14, 31, v0",w=[14],r=[0]); Vv("v_lshrrev_b32 v15, 5, v0",w=[15],r=[0])
Vv("v_lshlrev_b32 v12, 4, v0",w=[12],r=[0]); Vv("v_lshlrev_b32 v13, 4, v14",w=[13],r=[14])
Vv("v_lshl_or_b32 v13, v15, 14, v13",w=[13],r=[13,15])
Vv("v_bfe_u32 v16, v0, 1, 3",w=[16],r=[0]); Vv("v_xor_b32 v16, v16, v15",w=[16],r=[16,15]); Vv("v_lshlrev_b32 v16, 4, v16",w=[16],r=[16])
Vv("v_lshl_or_b32 v16, v14, 7, v16",w=[16],r=[16,14])
S("s_lshl_b32 s44, s9, 12")
Vv("v_add_u32 v2, s44, v16",w=[2],r=[16])
for ks in range(1,4): Vv(f"v_xor_b32 v{2+ks}, {32*ks}, v2",w=[2+ks],r=[2])
Vv("v_bfe_u32 v16, v0, 2, 2",w=[16],r=[0])
Vv("v_and_b32 v17, 1, v0",w=[17],r=[0]); Vv("v_bfe_u32 v18, v0, 1, 1",w=[18],r=[0])
Vv("v_lshlrev_b32 v17, 4, v17",w=[17],r=[17]); Vv("v_lshl_or_b32 v17, v18, 3, v17",w=[17],r=[17,18])
Vv("v_bfe_u32 v18, v0, 4, 1",w=[18],r=[0]); Vv("v_lshl_or_b32 v17, v18, 5, v17",w=[17],r=[17,18])
Vv("v_lshl_or_b32 v18, v15, 3, v16",w=[18],r=[15,16])
Vv("v_lshl_or_b32 v19, v18, 8, v17",w=[19],r=[18,17]); Vv("v_lshl_or_b32 v19, v16, 6, v19",w=[19],r=[16,19])
Vv("v_add_u32 v6, 0x4000, v19",w=[6],r=[19])
for t in range(1,4): Vv(f"v_xor_b32 v{6+t}, {64*t}, v6",w=[6+t],r=[6])
Vv("v_lshl_or_b32 v19, v18, 7, v17",w=[19],r=[18,17]); Vv("v_lshrrev_b32 v16, 1, v16",w=[16],r=[16]); Vv("v_lshl_or_b32 v19, v16, 6, v19",w=[19],r=[16,19])
Vv(f"v_add_u32 v10, {slot(12)}, v19",w=[10],r=[19]); Vv("v_xor_b32 v11, 64, v10",w=[11],r=[10])
Vv("v_mov_b32 v14, 0",w=[14]); Vv("v_mov_b32 v15, 1",w=[15])
S("s_lshl_b32 s50, s47, 2"); S("s_add_u32 s50, s50, s9")
S("s_lshl_b32 s55, s50, 7"); S(f"s_add_u32 s55, s55, {CNT+192*128}")
S("s_lshl_b32 s50, s50, 16")
S("s_lshl_b32 s44, s9, 16"); S("s_add_u32 s51, s48, s44"); S("s_lshl_b32 s44, s7, 10"); S("s_add_u32 s51, s51, s44")
S("s_lshl_b32 s44, s9, 17"); S("s_add_u32 s52, s49, s44"); S("s_lshl_b32 s44, s6, 9"); S("s_add_u32 s52, s52, s44")
cval=struct.unpack("<I",struct.pack("<f",(128**-0.5)*math.log2(math.e)))[0]
S(f"s_mov_b32 s53, {cval:#x}")
S("s_lshl_b32 s54, s47, 3"); S("s_add_u32 s54, s54, s7"); S("s_lshl_b32 s54, s54, 7"); S(f"s_add_u32 s54, s54, {CNT}")
S("s_lshl_b32 s58, s47, 2"); S("s_add_u32 s58, s58, s99"); S("s_lshl_b32 s58, s58, 2"); S("s_add_u32 s58, s58, s9"); S("s_lshl_b32 s58, s58, 7"); S(f"s_add_u32 s58, s58, {CNT+64*128}")
S("s_lshl_b32 s59, s47, 5")
e.wait_all(lds=True)
def cadd(sr,so,tag="cnt",count=True):
    S("s_mov_b64 exec, 1")
    e.vmem(f"buffer_atomic_add v{vI}, v{vZ}, {srd(sr)}, s{so} offen sc1",tag,r=[vI,vZ],count=count)
    S("s_mov_b64 exec, -1")
cur=[0]
def advance(s):
    d=slot(s)-cur[0]; cur[0]=slot(s)
    for r in aR+aT:
        if d>=0: Vv(f"v_add_u32 v{r}, {d}, v{r}",w=[r],r=[r])
        else: Vv(f"v_subrev_u32 v{r}, {-d}, v{r}",w=[r],r=[r])
def Rreg(s,ks):
    if s in (10,11): return Rbig+16*(s-10)+4*ks
    return Rdb+4*(ks&1)
def rd_R(dst,ks,off,tag):
    e.ds(f"ds_read_b128 v[{dst}:{dst+3}], v{aR[ks]} offset:{off}",tag,w=R(dst,4),r=[aR[ks]])
def rd_T(dst,a,off0,off1,tag):
    e.ds(f"ds_read_b64_tr_b16 v[{dst}:{dst+1}], v{a} offset:{off0}",tag,w=R(dst,2),r=[a])
    e.ds(f"ds_read_b64_tr_b16 v[{dst+2}:{dst+3}], v{a} offset:{off1}",tag,w=R(dst+2,2),r=[a])
def reads_for(s,ks):
    k=kind(s)
    if k in("P1","P2"):
        return (lambda: rd_R(Rreg(s,ks),ks,0,("R",s,ks)),
                [(lambda t=t: rd_T(T+4*t,aT[t],ks*4096,ks*4096+1024,("T",s,ks,t))) for t in range(4)])
    if k=="K":
        def two(t):
            for kk in (2*t,2*t+1): rd_R(Rbig+4*kk,kk%4,(kk//4)*16384,("K",kk))
        return (lambda: None,[(lambda t=t: two(t)) for t in range(4)])
    return (lambda: None,
            [(lambda t=t: rd_T(T+4*t,aT9[t%2],(2*ks+t//2)*2048,(2*ks+t//2)*2048+512,("T",s,ks,t))) for t in range(4)])
def cvt_tile(src,dst):
    for i in range(8):
        Vv(f"v_cvt_pk_bf16_f32 v{dst+i}, v{src+2*i}, v{src+2*i+1}",w=[dst+i],r=[src+2*i,src+2*i+1])
def stage(s,pre={},post={},atbar=None,nxt=True):
    k=kind(s)
    for ks in range(4):
        if ks==3:
            if nxt:
                advance(s+1)
                if atbar and atbar[0]: atbar[0]()
                barrier()
                if atbar and atbar[1]: atbar[1]()
                nr,nt=reads_for(s+1,0)
            else: nr,nt=(lambda:None),[(lambda:None)]*4
        else: nr,nt=reads_for(s,ks+1)
        nr()
        for t in range(4):
            for f in pre.get((ks,t),[]): f()
            e.need(lds=[("T",s,ks,t),("R",s,ks)])
            if k=="P1":   e.mfma(accG+16*t,T+4*t,Rreg(s,ks),None if (s==0 and ks==0) else accG+16*t)
            elif k=="P2":
                first=(ks==0 and (s in (10,13,15,17)))
                e.mfma(accG+16*t,Rreg(s,ks),T+4*t,None if first else accG+16*t)
            else:
                kk=2*ks+t//2; d=accG+16*(t%2)
                e.mfma(d,Rbig+4*kk,T+4*t,None if kk==0 else d)
            nt[t]()
            for f in post.get((ks,t),[]): f()
def PM(t,q,P,first=False,dst=None,vm=None):
    def f():
        if vm: e.need(vm=[vm])
        d=(outA+16*t) if dst is None else dst
        e.mfma(d,pk+8*t+4*q,P+4*q,None if (first and q==0) else d)
    return f
barrier()
nr,nt=reads_for(0,0); nr()
for t in range(4): nt[t]()
def grp_add():
    S("s_cmp_lg_u32 s9, 0"); S("s_cbranch_scc1 L_nga"); cadd(DBG,59,count=False); e.label("L_nga")
for s in range(9): stage(s,post={(0,1):[grp_add]} if (s==0 and SYNC) else {})
Sx=outA; tm=outA+16; tm2=outA+17; E=outA+32
for t in range(4):
    cvt_tile(accG+16*t,pk+8*t)
    for kk in (2*t,2*t+1):
        e.need(lds=[("K",kk)])
        e.mfma(Sx,Rbig+4*kk,pk+4*kk,None if kk==0 else Sx)
Vv(f"v_max3_f32 v{tm}, v{Sx}, v{Sx+1}, v{Sx+2}",w=[tm],r=[Sx,Sx+1,Sx+2])
Vv(f"v_max3_f32 v{tm2}, v{Sx+3}, v{Sx+4}, v{Sx+5}",w=[tm2],r=[Sx+3,Sx+4,Sx+5])
for i,d in ((6,tm),(8,tm2),(10,tm),(12,tm2)):
    Vv(f"v_max3_f32 v{d}, v{d}, v{Sx+i}, v{Sx+i+1}",w=[d],r=[d,Sx+i,Sx+i+1])
Vv(f"v_max3_f32 v{tm}, v{tm}, v{Sx+14}, v{Sx+15}",w=[tm],r=[tm,Sx+14,Sx+15])
Vv(f"v_max_f32 v{tm}, v{tm}, v{tm2}",w=[tm],r=[tm,tm2])
Vv(f"v_mov_b32 v{tm2}, v{tm}",w=[tm2],r=[tm])
Vv(f"v_permlane32_swap_b32 v{tm}, v{tm2}",w=[tm,tm2],r=[tm,tm2],perm=True)
Vv(f"v_max_f32 v{tm}, v{tm}, v{tm2}",w=[tm],r=[tm,tm2])
Vv(f"v_mul_f32 v{tm}, s53, v{tm}",w=[tm],r=[tm])
for i in range(16): Vv(f"v_fma_f32 v{E+i}, v{Sx+i}, s53, -v{tm}",w=[E+i],r=[Sx+i,tm])
for i in range(16): Vv(f"v_exp_f32 v{E+i}, v{E+i}",w=[E+i],r=[E+i],trans=True)
sm=outA+18
for i in range(4): Vv(f"v_add_f32 v{sm+i}, v{E+i}, v{E+4+i}",w=[sm+i],r=[E+i,E+4+i])
for j in (8,12):
    for i in range(4): Vv(f"v_add_f32 v{sm+i}, v{sm+i}, v{E+j+i}",w=[sm+i],r=[sm+i,E+j+i])
Vv(f"v_add_f32 v{sm}, v{sm}, v{sm+1}",w=[sm],r=[sm,sm+1]); Vv(f"v_add_f32 v{sm+2}, v{sm+2}, v{sm+3}",w=[sm+2],r=[sm+2,sm+3])
Vv(f"v_add_f32 v{sm}, v{sm}, v{sm+2}",w=[sm],r=[sm,sm+2])
Vv(f"v_mov_b32 v{tm2}, v{sm}",w=[tm2],r=[sm])
Vv(f"v_permlane32_swap_b32 v{sm}, v{tm2}",w=[sm,tm2],r=[sm,tm2],perm=True)
Vv(f"v_add_f32 v{sm}, v{sm}, v{tm2}",w=[sm],r=[sm,tm2])
Vv(f"v_rcp_f32 v{sm}, v{sm}",w=[sm],r=[sm],trans=True)
S("s_lshl_b32 s44, s6, 11"); S("s_add_u32 s44, s44, s50")
for i in range(16): Vv(f"v_mul_f32 v{E+i}, v{E+i}, v{sm}",w=[E+i],r=[E+i,sm])
cvt_tile(E,Pown)
for q in range(2):
    e.vmem(f"buffer_store_dwordx4 v[{Pown+4*q}:{Pown+4*q+3}], v{vL16}, {srd(WS)}, s44 offen offset:{1024*q} sc1","Pst",r=[vL16],store=R(Pown+4*q,4))
if STAMP: S("s_memrealtime s[60:61]"); e.wait_all(lds=True)
advance(10); barrier()
nr,nt=reads_for(10,0); nr()
for t in range(4): nt[t]()
def p_add():
    e.need(vm=["Pst"])
    if SYNC: cadd(WS,54)
stage(10,atbar=(p_add,None))
stage(11)
C=lambda t: (lambda: cvt_tile(accG+16*t,pk+8*t))
stage(12,pre={(0,0):[C(0)],(0,1):[C(1)]},
      post={(0,2):[C(2)],(0,3):[C(3)],(1,0):[PM(0,0,Pown,True),PM(0,1,Pown)],(1,2):[PM(1,0,Pown,True),PM(1,1,Pown)],
            (2,0):[PM(2,0,Pown,True),PM(2,1,Pown)],(2,2):[PM(3,0,Pown,True),PM(3,1,Pown)]})
def pub9(t9):
    def f():
        cvt_tile(Rbig+16*t9,o9p+8*t9)
        for q in range(2):
            S(f"s_add_u32 s44, s52, {(4*t9+2*q)*16384}")
            r0=o9p+8*t9+4*q
            e.vmem(f"buffer_store_dwordx4 v[{r0}:{r0+3}], v{vO9}, {srd(WS)}, s44 offen{PST}","O9st",r=[vO9],store=R(r0,4))
    return f
def ploads():
    for j in range(1,4):
        S(f"s_add_u32 s44, s8, {j}"); S("s_and_b32 s44, s44, 3"); S("s_and_b32 s45, s6, 28"); S("s_add_u32 s44, s44, s45")
        S("s_lshl_b32 s44, s44, 11"); S("s_add_u32 s44, s44, s50")
        for q in range(2):
            r0=Rbig+8*j+4*q
            e.vmem(f"buffer_load_dwordx4 v[{r0}:{r0+3}], v{vL16}, {srd(WS)}, s44 offen offset:{1024*q} sc1",("P",j),w=R(r0,4),r=[vL16])
stage(13,pre={(0,0):[C(0)],(0,1):[C(1)]},
      post={(0,3):[PM(0,0,Pown,True,dst=Rbig),PM(0,1,Pown,dst=Rbig)],(1,0):[PM(1,0,Pown,True,dst=Rbig+16),PM(1,1,Pown,dst=Rbig+16)],
            (2,0):[pub9(0)],(2,2):[pub9(1)]},
      atbar=(None,ploads))
stage(14)
allC={(0,t):[C(t)] for t in range(4)}
def pms(j,ks0):
    P=Rbig+8*j
    return {(ks0,0):[PM(0,0,P,vm=("P",j)),PM(0,1,P)],(ks0,2):[PM(1,0,P),PM(1,1,P)],(ks0+1,0):[PM(2,0,P),PM(2,1,P)],(ks0+1,2):[PM(3,0,P),PM(3,1,P)]}
def n_add():
    if SYNC and not K2: e.need(vm=["O9st"]); cadd(WS,55)
stage(15,pre=allC,post={(2,1):[n_add]})
stage(16,post=pms(1,1))
stage(17,pre=allC,post=pms(2,2))
stage(18,nxt=False)
P3=Rbig+24
def fin(t):
    cvt_tile(outA+16*t,accG+16*t)
    for q in range(2):
        S(f"s_add_u32 s44, s51, {(2*t+q)*8192}")
        r0=accG+16*t+4*q
        e.vmem(f"buffer_store_dwordx4 v[{r0}:{r0+3}], v{vL16}, {srd(WS)}, s44 offen{PST}","Mst",r=[vL16],store=R(r0,4))
for t in range(4):
    C(t)(); PM(t,0,P3,vm=("P",3))(); PM(t,1,P3)()
    if t>=2: fin(t-2)
fin(2); fin(3)
if STAMP: S("s_memrealtime s[62:63]")
if not K2:
    e.wait_all(vm=True)
    if SYNC: cadd(WS,58)
if STAMP:
    e.wait_all(vm=True); S("s_memrealtime s[64:65]"); e.wait_all(lds=True)
    S("s_cmp_lg_u32 s9, 0"); S("s_cbranch_scc1 L_end")
    Vv("v_writelane_b32 v1, s56, 0",w=[1]); Vv("v_writelane_b32 v1, s57, 1",w=[1])
    for i in range(6): Vv(f"v_writelane_b32 v1, s{60+i}, {2+i}",w=[1])
    Vv("v_lshlrev_b32 v2, 2, v0",w=[2],r=[0])
    S("s_lshl_b32 s44, s2, 8"); S(f"s_add_u32 s44, s44, {STB+192}"); S("s_mov_b64 exec, 0xff")
    e.vmem(f"buffer_store_dword v1, v2, {srd(WS)}, s44 offen","x",r=[1,2])
e.label("L_end")
e.raw("s_endpgm")
def kd(n,vg):
    return f'''.amdhsa_kernel {n}
  .amdhsa_next_free_vgpr {vg}
  .amdhsa_next_free_sgpr 102
  .amdhsa_accum_offset {vg}
  .amdhsa_group_segment_fixed_size 0
  .amdhsa_kernarg_size 104
  .amdhsa_user_sgpr_count 2
  .amdhsa_user_sgpr_kernarg_segment_ptr 1
  .amdhsa_system_sgpr_workgroup_id_x 1
  .amdhsa_float_denorm_mode_32 3
.end_amdhsa_kernel
'''
if K2:
    e.lines.append(".globl red_kernel\n.p2align 8\n.type red_kernel,@function\nred_kernel:")
    e.reset_haz(); e.vm=[]; e.lds=[]
    S("s_cmp_ge_u32 s2, 256"); S("s_cbranch_scc1 L_rend")
    for d,off in ((WS,96),(OUT,80)): S(f"s_load_dwordx2 s[{d}:{d+1}], s[0:1], {off}")
    S("s_bfe_u32 s4, s2, 0x10002")
    Vv("v_lshrrev_b32 v1, 6, v0",w=[1],r=[0])
    decode(); decode2()
    for d,n in ((OUT,512*2304),(WS,0x10000000)): S(f"s_mov_b32 s{d+2}, {n}"); S(f"s_mov_b32 s{d+3}, 0x00020000")
    S("s_mov_b32 s50, 0x3f80"); S("s_mov_b32 s51, 0x3f800000")
    S("s_cmp_lt_u32 s3, 4"); S("s_cbranch_scc1 L_r9")
    redm_setup(); e.wait_all(lds=True)
    red_loads(8,22,48,1024,D+16,""); red_acc(8,D+16,ACC); redm_finish(D,ACC)
    e.raw("s_endpgm")
    e.label("L_r9"); e.reset_haz(); e.vm=[]
    red9_setup(); e.wait_all(lds=True)
    red_loads(4,43,49,4096,D,""); red_acc(4,D,ACC); red9_finish(D,ACC)
    e.label("L_rend"); e.raw("s_endpgm")
bot='\n.section .rodata,"a"\n.p2align 6\n'+kd(KN,256)
if K2: bot+=".p2align 6\n"+kd("red_kernel",104)
sys.stdout.write(top+e.text()+bot)
sys.stderr.write(f"nops inserted: {e.nops}\n")
```
